```python
import torch

def _softmax(x, axis=-1):
    return torch.softmax(x, dim=axis)

def _gelu(x):
    return torch.nn.functional.gelu(x, approximate='tanh')

def _silu(x):
    return torch.nn.functional.silu(x)

def _sigmoid(x):
    return torch.sigmoid(x)

def _layernorm(x, axis=-1, eps=1e-05):
    m = x.mean(dim=axis, keepdim=True)
    v = x.var(dim=axis, keepdim=True, unbiased=False)
    return (x - m) / torch.sqrt(v + eps)

def _scatter_add(tgt, idx, src, axis=0):
    return tgt.clone().index_add_(axis, idx, src)

def _segment_sum(src, seg, n):
    out = torch.zeros((n,) + src.shape[1:], dtype=src.dtype)
    return out.index_add_(0, seg, src)

def _pad(x, pw):
    flat = tuple((v for pair in reversed(pw) for v in pair))
    return torch.nn.functional.pad(x, flat)
kernel_name = 'standalone__tensor_product_equiv_equiformer__graph'

def setup_inputs():

    _w = lambda a: (lambda t: t.to(torch.bfloat16) if t.is_floating_point() else t)(torch.as_tensor(a))
    N, deg, C, De = (10000, 64, 64, max(0, 1))
    E = N * deg
    src = (lambda lo, hi, *s: torch.randint(lo, hi, s))(0, N, E).to(torch.int64)
    dst = (lambda lo, hi, *s: torch.randint(lo, hi, s))(0, N, E).to(torch.int64)
    rvec = (lambda *s: torch.randn(*s, dtype=torch.bfloat16) * 0.05)(E, 3).to(float)
    rn = (torch.linalg.norm(rvec, dim=-1, keepdim=True) + 1e-06).to(float)
    rhat = (rvec / rn).to(float)
    eps = torch.zeros((3, 3, 3), dtype=float)
    eps[0, 1, 2] = eps[1, 2, 0] = eps[2, 0, 1] = 1.0
    eps[0, 2, 1] = eps[2, 1, 0] = eps[1, 0, 2] = -1.0
    return {'x': _w((lambda *s: torch.randn(*s, dtype=torch.bfloat16) * 0.4)(N, 4 * C).to(float)), 'rhat': _w(rhat), 'e_attr': _w((lambda *s: torch.randn(*s, dtype=torch.bfloat16) * 0.4)(E, De).to(float)), 'src': _w(src), 'dst': _w(dst), 'w_rad': _w((lambda *s: torch.randn(*s, dtype=torch.bfloat16) * 0.4)(De, 5 * C).to(float)), 'w_si0': _w((lambda *s: torch.randn(*s, dtype=torch.bfloat16) * 0.4)(2 * C, C).to(float)), 'w_si1': _w((lambda *s: torch.randn(*s, dtype=torch.bfloat16) * 0.05)(3 * C, C).to(float)), 'cg_eps': _w(eps)}

def reference(x, rhat, e_attr, src, dst, w_rad, w_si0, w_si1, cg_eps):
    N = x.shape[0]
    C = w_si0.shape[1]
    E = rhat.shape[0]
    x0 = x[:, :C].clone()
    x1 = x[:, C:].reshape(N, 3, C)
    R = (e_attr @ w_rad).reshape(E, 5, C)
    f0 = x0[src]
    f1 = x1[src]
    Y1 = rhat
    p00_0 = f0 * R[:, 0, :]
    p11_0 = torch.einsum('ejc,ej->ec', f1, Y1) * R[:, 1, :]
    p01_1 = torch.einsum('ec,ej->ejc', f0, Y1) * R[:, 2, :][:, None, :]
    p10_1 = f1 * R[:, 3, :][:, None, :]
    p11_1 = torch.einsum('ijk,ekc,ej->eic', cg_eps, f1, Y1) * R[:, 4, :][:, None, :]
    m0 = torch.concatenate([p00_0, p11_0], axis=-1) @ w_si0
    m1 = torch.einsum('ejp,pc->ejc', torch.concatenate([p01_1, p10_1, p11_1], axis=-1), w_si1)
    agg0 = _segment_sum(m0, dst, N)
    agg1 = _segment_sum(m1.reshape(E, 3 * C), dst, N).reshape(N, 3, C)
    gate = _sigmoid(agg0)
    out1 = agg1 * gate[:, None, :]
    return torch.concatenate([agg0, out1.reshape(N, 3 * C)], axis=-1)
```

```python
import sys

NAME = "standalone__tensor_product_equiv_equiformer__graph"
HEADER = open("cdna_kernels/%s.s.ref" % NAME).read().split("; Override launch")[0]

REC_STRIDE = 30848
TAB_STRIDE = 2176
TAB_OFF = 8 << 20
EPOCH_OFF = 10 << 20
STAMP_OFF = 16 << 20
for d in range(10000):
    assert (d * 214749) >> 23 == d * 16 // 625

class Asm:
    def __init__(self):
        self.l = []
    def __call__(self, s):
        for x in s.split("\n"):
            x = x.strip()
            if x:
                self.l.append(x if x.endswith(":") else "    " + x)
    def text(self):
        return "\n".join(self.l) + "\n"

KD = """.section .rodata,"a"
.p2align 6
.amdhsa_kernel {name}
  .amdhsa_next_free_vgpr {vgpr}
  .amdhsa_next_free_sgpr {sgpr}
  .amdhsa_accum_offset {accum}
  .amdhsa_group_segment_fixed_size 0
  .amdhsa_kernarg_size 96
  .amdhsa_user_sgpr_count 2
  .amdhsa_user_sgpr_kernarg_segment_ptr 1
  .amdhsa_system_sgpr_workgroup_id_x 1
.end_amdhsa_kernel
"""

class Opt:
    stamp = False
    tstamp = False
    nt = True
    psleep = 4
    ostore = ""
    pfa = 0
    pfb = 0
    pfc = 0
    pfw = 0
    aslist = False
    xp = 0
    cpf = 0
    tlb = 0
    wpos = 1
    tsleep0 = 0
    tsleep = 1
    def __init__(self, **kw):
        for k, v in kw.items():
            assert hasattr(self, k), k
            setattr(self, k, v)

NST = 12
def stamp(e, o, i):
    if o.stamp:
        e(f"s_memrealtime s[76:77]\ns_waitcnt lgkmcnt(0)\ns_mov_b32 s{88+i}, s76")
def stamp_init(e, o):
    if o.stamp:
        e("s_memrealtime s[78:79]")
        for i in range(NST):
            e(f"s_mov_b32 s{88+i}, 0")
def stamp_out(e, o):
    if not o.stamp:
        return
    e("s_waitcnt lgkmcnt(0)\ns_mov_b32 s88, s78")
    e("s_mov_b64 exec, 1")
    e(f"s_mul_i32 s76, s2, 16\ns_add_u32 s76, s76, s14\ns_lshl_b32 s76, s76, 6\ns_add_u32 s76, s76, {STAMP_OFF}")
    e("v_mov_b32 v1, s76")
    for i in range(NST):
        e(f"v_mov_b32 v{4+i}, s{88+i}")
    for k in range(NST // 4):
        e(f"global_store_dwordx4 v1, v[{4+4*k}:{7+4*k}], s[8:9] offset:{16*k}")

def half(e, dst, reg, hi):
    e(f"v_and_b32 v{dst}, 0xffff0000, v{reg}" if hi else f"v_lshlrev_b32 v{dst}, 16, v{reg}")

CAP = 128
KSTR = 4 * 132
L_CNT = 0
L_KEY = 1024
KEYLIM = L_KEY + 40 * KSTR
L_COEF = L_KEY + 21504
COFF = L_COEF - 2 * L_KEY
L_T = 65536
assert L_COEF + 43008 == L_T
P_HIST = L_T
P_BASES = L_T + 4096
P_STAGE = P_BASES + 10240
P_W = P_STAGE + 30720
P_WR = P_W + 40960
LDS = P_WR + 1024
assert LDS >= L_T + 40 * 2048 and LDS <= 163840
NLC = 24
NGC = NLC // 4
VB, VA, VACC = 72, 48, 24
VW, VO, VF = 32, 80, 128

def gen(e, o):
    nt = " nt" if o.nt else ""
    K = NAME + "_kernel"
    e(f".p2align 8\n.type {K},@function\n{K}:")
    e("s_cmp_ge_u32 s2, 256\ns_cbranch_scc1 L_end")
    stamp_init(e, o)
    e("s_load_dwordx8 s[16:23], s[0:1], 8")
    e("s_load_dwordx2 s[8:9], s[0:1], 88")
    e("s_load_dwordx2 s[4:5], s[0:1], 0")
    e("s_load_dwordx4 s[24:27], s[0:1], 40")
    e("s_load_dwordx2 s[28:29], s[0:1], 56")
    e("s_load_dwordx2 s[10:11], s[0:1], 72")
    e("v_lshrrev_b32 v4, 6, v0\nv_and_b32 v1, 63, v0")
    e("v_min_u32 v5, 624, v0")
    e("v_readfirstlane_b32 s14, v4")
    e("s_mul_i32 s48, s2, 625\nv_add_u32 v5, s48, v5")
    e("v_lshlrev_b32 v6, 4, v5")
    e(f"v_lshlrev_b32 v26, 2, v0\nv_add_u32 v26, {P_HIST}, v26\nv_mov_b32 v64, 0")
    e("ds_write_b32 v26, v64")
    if o.cpf or o.tlb:
        e("s_cmp_lt_u32 s14, 10\ns_cbranch_scc1 L_prod")
        if o.cpf:
            e("s_getpc_b64 s[46:47]\nL_pc:")
            e("v_subrev_u32 v70, 640, v0\nv_lshlrev_b32 v70, 7, v70\nv_min_u32 v70, L_end-L_pc, v70")
            e("global_load_dword v71, v70, s[46:47]")
        if o.tlb:
            e(f"v_subrev_u32 v70, 640, v0\nv_mul_u32_u24 v69, {2*REC_STRIDE}, v70\nv_add_u32 v69, 30720, v69\nv_mul_u32_u24 v70, 40000, v70")
            e("s_waitcnt lgkmcnt(0)")
            e("global_load_dword v71, v69, s[8:9]")
            if o.tlb > 1:
                e("global_load_dword v71, v70, s[4:5]\nglobal_load_dword v71, v70, s[10:11]")
                e(f"v_subrev_u32 v70, 640, v0\nv_mul_u32_u24 v69, {2*TAB_STRIDE}, v70\nv_add_u32 v69, {TAB_OFF + 2048}, v69\nglobal_load_dword v71, v69, s[8:9]")
        e("s_branch L_helper\nL_prod:")
    else:
        e("s_cmp_ge_u32 s14, 10\ns_cbranch_scc1 L_helper")
    e("s_waitcnt lgkmcnt(0)")
    e(f"global_load_dwordx4 v[8:11], v6, s[22:23]{nt}")
    e(f"s_add_u32 s30, s8, {EPOCH_OFF}\ns_addc_u32 s31, s9, 0\ns_load_dword s73, s[30:31], 0")
    e("v_lshlrev_b32 v7, 3, v5\nv_mul_u32_u24 v5, 24, v5")
    e("s_barrier")
    e(f"global_load_dwordx4 v[12:15], v6, s[20:21]{nt}")
    e(f"global_load_dwordx2 v[16:17], v7, s[18:19]{nt}")
    e(f"global_load_dwordx4 v[20:23], v5, s[16:17]{nt}")
    e(f"global_load_dwordx2 v[24:25], v5, s[16:17] offset:16{nt}")
    def common_consts():
        e("v_and_b32 v2, 15, v0\nv_lshrrev_b32 v3, 4, v1")
        e("s_and_b32 s3, s2, 7\ns_lshl_b32 s3, s3, 5\ns_lshr_b32 s12, s2, 3\ns_add_u32 s3, s3, s12")
        e("s_mov_b32 s6, 5120000\ns_mov_b32 s7, 0x20000")
        e("s_mul_i32 s12, s3, 625\ns_add_u32 s13, s12, 640\ns_add_u32 s12, s12, 15\ns_lshr_b32 s12, s12, 4\ns_lshr_b32 s13, s13, 4\ns_sub_u32 s13, s13, s12")
        e("s_mov_b32 s15, 0\ns_mov_b32 s60, 0\ns_mov_b32 s61, 0")
        e(f"s_lshr_b32 s75, s3, 2\ns_lshl_b32 s75, s75, 4\ns_and_b32 s58, s3, 1\ns_lshl_b32 s58, s58, 3\ns_add_u32 s75, s75, s58")
        e(f"s_and_b32 s58, s3, 2\ns_lshl_b32 s58, s58, 9\ns_add_u32 s75, s75, s58\ns_add_u32 s75, s75, {TAB_OFF}")
    def zero_lists_all():
        e("v_mov_b32 v65, 0\nv_mov_b32 v66, 0\nv_mov_b32 v67, 0\nv_lshlrev_b32 v68, 4, v0")
        for k in range(5):
            e(f"ds_write_b128 v68, v[64:67] offset:{1024 + 12288*k}")
    zero_lists_all()
    common_consts()
    e("v_mov_b32 v7, 1\nv_lshlrev_b32 v27, 4, v1")
    e(f"s_lshl_b32 s48, s14, 10\ns_add_u32 s48, s48, {P_BASES - P_HIST}")
    e(f"s_mul_i32 s49, s2, {REC_STRIDE}")
    e("v_mov_b32 v69, 625\nv_cmp_lt_u32 s[62:63], v0, v69")
    e(f"v_mov_b32 v69, {P_HIST}\ns_mov_b32 s50, 0x3fc")
    e("s_waitcnt vmcnt(4)")
    stamp(e, o, 1)
    for i in range(4):
        e(f"v_mul_u32_u24 v{28+i}, 214749, v{8+i}")
    e("s_mov_b64 exec, s[62:63]")
    for i in range(4):
        e(f"v_lshrrev_b32 v{28+i}, 21, v{28+i}\nv_and_or_b32 v{28+i}, v{28+i}, s50, v69")
        e(f"ds_add_rtn_u32 v{32+i}, v{28+i}, v7")
    e("s_mov_b64 exec, -1")
    e("v_add_u32 v26, v27, v69")
    e("s_waitcnt lgkmcnt(0)\ns_barrier")
    stamp(e, o, 2)
    e("ds_read_b128 v[56:59], v26")
    e("s_add_u32 s73, s73, 0x9e3779b1\ns_mul_i32 s74, s73, 0x01000193\ns_and_b32 s74, s74, 0xff000000")
    e("s_waitcnt lgkmcnt(0)")
    e("v_add_u32 v37, v56, v57\nv_add_u32 v38, v58, v59\nv_add_u32 v36, v37, v38")
    e("v_mov_b32 v39, v36\ns_nop 1")
    for sh in (1, 2, 4, 8):
        e(f"v_add_u32_dpp v39, v39, v39 row_shr:{sh} row_mask:0xf bank_mask:0xf\ns_nop 1")
    e("v_add_u32_dpp v39, v39, v39 row_bcast:15 row_mask:0xa bank_mask:0xf\ns_nop 1")
    e("v_add_u32_dpp v39, v39, v39 row_bcast:31 row_mask:0xc bank_mask:0xf")
    e("v_sub_u32 v60, v39, v36")
    e("v_add_u32 v61, v60, v56\nv_add_u32 v62, v60, v37\nv_add_u32 v63, v62, v58")
    e("v_add_u32 v36, s48, v26")
    e("ds_write_b128 v36, v[60:63]")
    e("s_mov_b64 exec, s[62:63]")
    for i in range(4):
        e(f"v_add_u32 v{28+i}, s48, v{28+i}")
    for i in range(4):
        e(f"ds_read_b32 v{36+i}, v{28+i}")
    e(f"v_mov_b32 v69, {P_STAGE}")
    e("s_waitcnt lgkmcnt(0)")
    for i in range(4):
        e(f"v_add_u32 v{32+i}, v{32+i}, v{36+i}\nv_mad_u32_u24 v{32+i}, v{32+i}, 12, v69")
    e("s_waitcnt vmcnt(0)")
    stamp(e, o, 3)
    for i in range(4):
        e(f"v_lshl_or_b32 v{42+4*i}, v{8+i}, 16, v{12+i}")
        half(e, 36, 16 + i // 2, i % 2)
        for j in range(3):
            n = 3 * i + j
            half(e, 37 + j, 20 + n // 2, n % 2)
        for j in range(3):
            e(f"v_mul_f32 v{37+j}, v36, v{37+j}")
        e(f"v_cvt_pk_bf16_f32 v{40+4*i}, v36, v37\nv_cvt_pk_bf16_f32 v{41+4*i}, v38, v39")
        e(f"ds_write2_b32 v{32+i}, v{40+4*i}, v{41+4*i} offset0:0 offset1:1")
        e(f"ds_write_b32 v{32+i}, v{42+4*i} offset:8")
    e("s_mov_b64 exec, -1")
    e(f"v_add_u32 v5, {P_STAGE}, v68\nv_add_u32 v6, s49, v68\nv_add_u32 v7, 10240, v6\nv_add_u32 v26, 20480, v6")
    e("s_waitcnt lgkmcnt(0)\ns_barrier")
    stamp(e, o, 4)
    for k in range(3):
        e(f"ds_read_b128 v[{8+4*k}:{11+4*k}], v5 offset:{10240*k}")
    for k, a in enumerate((6, 7, 26)):
        e(f"s_waitcnt lgkmcnt({2-k})")
        e(f"global_store_dwordx4 v{a}, v[{8+4*k}:{11+4*k}], s[8:9] sc1")
    e("s_cmp_ge_u32 s14, 8\ns_cbranch_scc1 L_p89")
    e("v_and_b32 v5, 7, v2\nv_lshl_add_u32 v5, v5, 2, v3\nv_lshl_add_u32 v5, v5, 3, s14")
    e(f"v_mul_u32_u24 v30, {TAB_STRIDE}, v5\nv_add_u32 v30, s75, v30")
    e(f"v_lshl_add_u32 v5, v3, 3, s14\nv_mul_u32_u24 v5, {REC_STRIDE}, v5\nv_mul_u32_u24 v6, 12, v2\nv_add_u32 v31, v5, v6")
    e(f"s_mov_b32 s68, s8\ns_mov_b32 s69, s9\ns_mov_b32 s70, {TAB_OFF}\ns_mov_b32 s71, 0x20000")
    for i in range(96):
        e(f"v_mov_b32 v{VB+i}, 0")
    if o.xp:
        e("s_lshl_b32 s48, s2, 3\ns_add_u32 s48, s48, s14\ns_mul_i32 s48, s48, 2560\nv_lshl_add_u32 v27, v1, 7, s48")
        e("v_cmp_gt_u32 vcc, 20, v1\nv_mov_b32 v29, 0x40000000\ns_nop 0\nv_cndmask_b32 v27, v29, v27, vcc")
    e("v_and_b32 v20, 3, v2\nv_mul_u32_u24 v20, 0x5555, v20")
    e("v_lshl_add_u32 v21, v3, 5, v2")
    e("v_mov_b32 v22, 1\nv_mov_b32 v23, 4")
    e(f"s_lshl_b32 s50, s12, 2\ns_sub_u32 s50, {L_CNT}, s50")
    e("s_waitcnt vmcnt(0)")
    stamp(e, o, 5)
    e("s_barrier")
    e("v_lshlrev_b32 v16, 4, v2\nv_mov_b32 v17, 512")
    e(f"v_lshlrev_b32 v18, 2, v3\nv_lshl_add_u32 v18, v2, 4, v18\nv_add_u32 v18, {L_KEY}, v18")
    e("v_lshrrev_b32 v19, 1, v3\nv_lshlrev_b32 v19, 5, v19\nv_and_b32 v8, 1, v3\nv_lshl_add_u32 v19, v8, 4, v19")
    e(f"v_lshrrev_b32 v8, 2, v2\nv_lshl_add_u32 v19, v8, 1, v19\nv_add_u32 v19, {L_COEF}, v19")
    e("v_add_u32 v13, 16, v2\nv_mov_b32 v12, 0x40000000")
    e("s_mov_b32 s72, 0")
    if o.tsleep0:
        e(f"s_sleep {o.tsleep0}")
    e("L_tpoll:")
    e("global_load_dwordx2 v[4:5], v30, s[8:9] sc1")
    e("s_waitcnt vmcnt(0)")
    e("v_and_b32 v6, 0xff000000, v4\nv_cmp_eq_u32 vcc, s73, v5\nv_cmp_eq_u32 s[48:49], s74, v6\ns_and_b64 vcc, vcc, s[48:49]")
    e("s_cmp_eq_u64 vcc, -1\ns_cbranch_scc1 L_tready")
    e(f"s_sleep {o.tsleep}\ns_add_u32 s72, s72, 1\ns_cmp_lt_u32 s72, 0x10000\ns_cbranch_scc1 L_tpoll\ns_endpgm")
    e("L_tready:")
    stamp(e, o, 6)
    e("v_and_b32 v5, 0xfff, v4\nv_bfe_u32 v4, v4, 12, 12\nv_mul_u32_u24 v5, 12, v5\ns_nop 0")
    for i in range(8):
        e(f"v_mov_b32_dpp v9, v4 row_newbcast:{i} row_mask:0xf bank_mask:0xf")
        e(f"v_add_u32_dpp v{35+4*i}, v5, v31 row_newbcast:{i} row_mask:0xf bank_mask:0xf")
        e(f"v_cmp_lt_u32 s[{16+2*i}:{17+2*i}], v2, v9")
        e(f"v_cmp_lt_u32 s[{32+2*i}:{33+2*i}], v13, v9")
        e(f"v_add_u32 v31, {32*REC_STRIDE}, v31")
        e(f"v_cndmask_b32 v{10+i%2}, v12, v{35+4*i}, s[{16+2*i}:{17+2*i}]")
        e(f"buffer_load_dwordx3 v[{32+4*i}:{34+4*i}], v{10+i%2}, s[68:71], 0 offen sc1")
    for i in range(8):
        e(f"s_cmp_eq_u64 s[{32+2*i}:{33+2*i}], 0\ns_cbranch_scc1 L_now1_{i}")
        e(f"s_mov_b64 exec, s[{32+2*i}:{33+2*i}]")
        e(f"global_load_dwordx3 v[{VB+4*i}:{VB+2+4*i}], v{35+4*i}, s[8:9] offset:192 sc1")
        e(f"L_now1_{i}:")
    e("s_mov_b64 exec, -1")
    e(f"v_mov_b32 v10, {L_CNT + 248}\nv_cmp_lt_u32 vcc, 32, v4\ns_and_saveexec_b64 s[48:49], vcc")
    e("ds_max_u32 v10, v4")
    def rank(r):
        e(f"v_mad_u32_u16 v{r+3}, v{r+2}, v23, s50 op_sel:[1,0,0,0]")
        e(f"ds_add_rtn_u32 v{r+3}, v{r+3}, v23")
    def place(r):
        e(f"v_min_u32 v{r+3}, {KEYLIM}, v{r+3}\nv_lshlrev_b32 v8, 1, v{r+3}")
        e(f"ds_write_b32 v{r+3}, v{r+2}")
        e(f"ds_write_b64 v8, v[{r}:{r+1}] offset:{COFF}")
    for hf in range(2):
        e(f"s_waitcnt vmcnt({4 if hf == 0 else 0})")
        if hf == 1:
            if o.xp:
                e("s_mov_b64 exec, -1\nbuffer_load_dword v167, v27, s[4:7], 0 offen")
            stamp(e, o, 7)
        for i in range(4 * hf, 4 * hf + 4):
            e(f"s_mov_b64 exec, s[{16+2*i}:{17+2*i}]")
            rank(32 + 4 * i)
        if hf == 1:
            for i in range(8):
                e(f"s_cmp_eq_u64 s[{32+2*i}:{33+2*i}], 0\ns_cbranch_scc1 L_nor1_{i}")
                e(f"s_mov_b64 exec, s[{32+2*i}:{33+2*i}]")
                rank(VB + 4 * i)
                e(f"L_nor1_{i}:")
        e("s_waitcnt lgkmcnt(0)")
        for i in range(4 * hf, 4 * hf + 4):
            e(f"s_mov_b64 exec, s[{16+2*i}:{17+2*i}]")
            place(32 + 4 * i)
    for i in range(8):
        e(f"s_cmp_eq_u64 s[{32+2*i}:{33+2*i}], 0\ns_cbranch_scc1 L_nop1_{i}")
        e(f"s_mov_b64 exec, s[{32+2*i}:{33+2*i}]")
        place(VB + 4 * i)
        e(f"L_nop1_{i}:")
    e("L_placed:")
    e("s_mov_b64 exec, -1")
    e(f"v_lshlrev_b32 v8, 2, v1\nv_mul_u32_u24 v9, {KSTR}, v1\nv_add_u32 v9, {L_KEY}, v9")
    e("s_waitcnt lgkmcnt(0)\ns_barrier")
    stamp(e, o, 8)
    def check_overflow(lbl, lbl_restart):
        e(f"ds_read_b32 v15, v8 offset:{L_CNT}\ns_waitcnt lgkmcnt(0)")
        e(f"v_readlane_b32 s65, v15, 62\nv_sub_u32 v15, v15, v9")
        e(f"s_cmp_lg_u32 s15, 0\ns_cbranch_scc1 {lbl}_ok")
        e(f"v_cmp_lt_u32 vcc, {4*CAP}, v15")
        e("s_and_b32 vcc_hi, vcc_hi, 0xff\ns_or_b32 s48, vcc_lo, vcc_hi\ns_or_b32 s48, s48, s65")
        e(f"s_cmp_eq_u32 s48, 0\ns_cbranch_scc1 {lbl}_ok")
        e("s_mov_b32 s15, 1\ns_max_u32 s64, s65, 32\ns_min_u32 s64, s64, 2560")
        e(f"s_barrier\ns_branch {lbl_restart}")
        e(f"{lbl}_ok:")
    check_overflow("L_g", "L_slow_load")
    e("s_mov_b32 s52, s14")
    e(f"v_mov_b32 v14, {L_CNT + 252}")
    e("L_task:")
    e("s_cmp_ge_u32 s52, 40\ns_cselect_b32 s53, 256, 0\ns_cselect_b32 s54, 40, 0\ns_sub_u32 s54, s52, s54")
    e(f"s_mul_i32 s56, s54, {KSTR}\nv_add_u32 v12, s56, v18")
    e("ds_read2st64_b32 v[32:33], v12 offset0:0 offset1:1")
    e("v_readlane_b32 s55, v15, s54")
    e("s_lshl_b32 s56, s56, 1\nv_add_u32 v13, s56, v19")
    for i in range(8):
        e(f"v_mov_b32 v{VACC+i}, 0")
    e("s_mov_b64 exec, 1\nds_add_rtn_u32 v11, v14, v22\ns_mov_b64 exec, -1")
    e("s_waitcnt lgkmcnt(1)")
    e("v_mul_u32_u24_sdwa v32, v32, v17 dst_sel:DWORD dst_unused:UNUSED_PAD src0_sel:WORD_0 src1_sel:DWORD")
    e("v_mul_u32_u24_sdwa v33, v33, v17 dst_sel:DWORD dst_unused:UNUSED_PAD src0_sel:WORD_0 src1_sel:DWORD")
    def loads(lo, hi, lbl):
        for i in range(lo, hi):
            e(f"s_cmp_le_u32 s55, {16*i}\ns_cbranch_scc1 {lbl}")
            e(f"v_add_u32_dpp v{8+i%2}, v{32+i//16}, v16 row_newbcast:{i%16} row_mask:0xf bank_mask:0xf")
            e(f"buffer_load_dwordx4 v[{VB+4*(i-lo)}:{VB+3+4*(i-lo)}], v{8+i%2}, s[4:7], s53 offen")
    def areads(lo, hi, lbl):
        for G in range(lo, hi):
            e(f"s_cmp_le_u32 s55, {64*G}\ns_cbranch_scc1 {lbl}")
            for r in range(4):
                e(f"ds_read_u16 v{VA+4*(G-lo)+r}, v13 offset:{128*G + 64*(r%2) + 8*(r//2)}")
    def mmas(lo, hi, lbl):
        for G in range(lo, hi):
            e(f"s_cmp_le_u32 s55, {64*G}\ns_cbranch_scc1 {lbl}")
            q = VB + 16 * (G - lo)
            a = VA + 4 * (G - lo)
            e(f"v_swap_b32 v{q+2}, v{q+8}\nv_swap_b32 v{q+3}, v{q+9}\nv_swap_b32 v{q+6}, v{q+12}\nv_swap_b32 v{q+7}, v{q+13}\ns_nop 1")
            e(f"v_smfmac_f32_16x16x64_bf16 v[{VACC}:{VACC+3}], v[{a}:{a+3}], v[{q}:{q+7}], v20")
            e(f"v_smfmac_f32_16x16x64_bf16 v[{VACC+4}:{VACC+7}], v[{a}:{a+3}], v[{q+8}:{q+15}], v20")
    loads(0, NLC, "L_issued")
    e("L_issued:")
    areads(0, NGC, "L_aread")
    e("L_aread:")
    e("s_waitcnt vmcnt(0) lgkmcnt(0)")
    mmas(0, NGC, "L_mdone")
    e(f"s_cmp_gt_u32 s55, {16*NLC}\ns_cbranch_scc1 L_chunk2")
    e("L_mdone:")
    e(f"s_and_b32 s56, s54, 15\nv_xor_b32 v8, s56, v21\ns_lshl_b32 s56, s54, 11\ns_add_u32 s56, s56, s53\ns_add_u32 s56, s56, {L_T}\nv_lshl_add_u32 v8, v8, 4, s56")
    e(f"s_lshr_b32 s56, s54, 4\ns_cmp_lg_u32 s53, 0\ns_cselect_b32 s57, 3, 0\ns_add_u32 s56, s56, s57\ns_lshl_b32 s56, s56, 2\nv_mov_b32 v9, s56")
    if o.tstamp:
        e("s_memrealtime s[76:77]\ns_lshl_b32 s57, s52, 2\nv_mov_b32 v40, s57\ns_waitcnt lgkmcnt(0)\nv_mov_b32 v41, s76\nds_write_b32 v40, v41 offset:256")
    e("v_readfirstlane_b32 s52, v11")
    e("s_nop 5")
    for d in range(4):
        e(f"v_cvt_pk_bf16_f32 v{36+d}, v{VACC+2*d}, v{VACC+2*d+1}")
    e(f"ds_write_b128 v8, v[36:39]")
    e(f"s_mov_b64 exec, 1\nds_add_u32 v9, v22 offset:{L_CNT + 192}\ns_mov_b64 exec, -1")
    e("s_add_u32 s52, s52, 8\ns_cmp_lt_u32 s52, 80\ns_cbranch_scc1 L_task")
    stamp(e, o, 9)
    def adv_slow(lbl_round, lbl_done):
        e(f"s_cmp_eq_u32 s15, 0\ns_cbranch_scc1 {lbl_done}")
        e("s_add_u32 s61, s61, 1\ns_cmp_lt_u32 s61, 32\ns_cselect_b32 s48, 0, 16\ns_cselect_b32 s61, s61, 0\ns_add_u32 s60, s60, s48")
        e(f"s_cmp_ge_u32 s60, s64\ns_cbranch_scc1 {lbl_done}")
        e(f"s_waitcnt lgkmcnt(0)\ns_barrier\ns_branch {lbl_round}")
    adv_slow("L_slow_load", "L_gdone")
    e("L_gdone:")
    e("s_or_b32 s48, s2, s14\ns_cmp_lg_u32 s48, 0\ns_cbranch_scc1 L_noepoch")
    e(f"v_mov_b32 v8, {EPOCH_OFF}\nv_mov_b32 v9, s73\ns_mov_b64 exec, 1\nglobal_store_dword v8, v9, s[8:9]")
    e("L_noepoch:")
    stamp_out(e, o)
    e("s_endpgm")
    e("L_chunk2:")
    loads(NLC, 32, "L_issued2")
    e("L_issued2:")
    areads(NGC, 8, "L_aread2")
    e("L_aread2:")
    e("s_waitcnt vmcnt(0) lgkmcnt(0)")
    mmas(NGC, 8, "L_mdone")
    e("s_branch L_mdone")
    e("L_slow_load:")
    e("s_barrier")
    e("s_cmp_ge_u32 s14, 2\ns_cbranch_scc1 L_placed")
    e("s_lshl_b32 s48, s61, 3\ns_lshl_b32 s49, s14, 2\ns_add_u32 s48, s48, s49\nv_add_u32 v6, s48, v3")
    e(f"v_mul_u32_u24 v7, {TAB_STRIDE}, v6\nv_add_u32 v7, s75, v7")
    e("global_load_dword v8, v7, s[8:9] sc1")
    e(f"v_mul_u32_u24 v6, {REC_STRIDE}, v6\nv_add_u32 v10, s60, v2")
    e("s_waitcnt vmcnt(0)")
    e("v_bfe_u32 v9, v8, 12, 12\nv_and_b32 v8, 0xfff, v8\nv_add_u32 v8, v8, v10\nv_mul_u32_u24 v8, 12, v8\nv_add_u32 v35, v8, v6")
    e("v_cmp_lt_u32 vcc, v10, v9\ns_and_b64 exec, exec, vcc")
    e("s_cbranch_execz L_placed")
    e("global_load_dwordx3 v[32:34], v35, s[8:9] sc1\ns_waitcnt vmcnt(0)")
    rank(32)
    e("s_waitcnt lgkmcnt(0)")
    place(32)
    e("s_branch L_placed")

    e("L_p89:")
    for i in range(4):
        e(f"v_lshl_or_b32 v{40+2*i}, v{56+i}, 12, v{60+i}\nv_or_b32 v{40+2*i}, s74, v{40+2*i}\nv_mov_b32 v{41+2*i}, s73")
    e(f"s_mul_i32 s48, s2, {TAB_STRIDE}\ns_add_u32 s48, s48, {TAB_OFF}\nv_lshl_add_u32 v30, v1, 4, s48")
    e("s_waitcnt vmcnt(0)")
    stamp(e, o, 5)
    e("s_barrier")
    e("s_cmp_lg_u32 s14, 8\ns_cbranch_scc1 L_p9")
    e("global_store_dwordx4 v30, v[40:43], s[8:9] sc1\ns_branch L_gemm")
    e("L_p9:\nglobal_store_dwordx4 v30, v[44:47], s[8:9] offset:1024 sc1")
    e("s_branch L_gemm")

    e("L_helper:")
    e("s_waitcnt lgkmcnt(0)\ns_barrier")
    zero_lists_all()
    common_consts()
    e("v_lshlrev_b32 v5, 4, v1")
    e("s_cmp_eq_u32 s14, 11\ns_cbranch_scc1 L_h11")
    for k in range(3):
        e(f"ds_write_b128 v5, v[64:67] offset:{62464 + 1024*k}")
    e("s_waitcnt lgkmcnt(0)\ns_barrier")
    if o.wpos == 2:
        e("s_barrier")
    for k in range(20):
        if k % 4 == 0:
            e(f"v_add_u32 v6, {1024*(k % 16)}, v5")
        e(f"global_load_dwordx4 v[{72+4*k}:{75+4*k}], v6, {'s[26:27]' if k < 16 else 's[28:29]'} offset:{1024*(k%4)}")
    e(f"v_add_u32 v7, {P_W}, v5")
    e("s_branch L_h2")
    e("L_h11:")
    e(f"v_mul_u32_u24 v8, {KSTR}, v1\nv_add_u32 v8, {L_KEY}, v8\nv_cmp_gt_u32 vcc, 40, v1\nv_lshlrev_b32 v9, 2, v1\ns_nop 0\nv_cndmask_b32 v8, 0, v8, vcc")
    e("ds_write_b32 v9, v8")
    e("s_waitcnt lgkmcnt(0)\ns_barrier")
    if o.wpos == 2:
        e("s_barrier")
    for k in range(20):
        if k % 4 == 0:
            e(f"v_add_u32 v6, {4096 + 1024*k}, v5")
        e(f"global_load_dwordx4 v[{72+4*k}:{75+4*k}], v6, s[28:29] offset:{1024*(k%4)}")
    e(f"v_add_u32 v7, {P_W + 20480}, v5")
    e("L_h2:")
    e("v_min_u32 v6, 624, v5")
    e("global_load_dwordx4 v[152:155], v6, s[24:25]")
    e("s_lshr_b32 s46, s2, 3\ns_lshl_b32 s46, s46, 1\ns_add_u32 s46, s46, s14\ns_sub_u32 s46, s46, 10\ns_lshl_b32 s46, s46, 14")
    e("v_lshrrev_b32 v10, 1, v1\nv_lshlrev_b32 v10, 9, v10\nv_and_b32 v11, 1, v1\nv_lshl_add_u32 v10, v11, 7, v10")
    npf = [0]
    def pf(n, wait):
        for k in range(n):
            if wait is not None and k > 0:
                e(f"s_waitcnt vmcnt({wait})")
            i = npf[0]; npf[0] += 1
            e(f"s_add_u32 s47, s46, {(i % 5) * (1 << 20) + (i // 5) * 256}\nbuffer_load_dword v11, v10, s[4:7], s47 offen")
    pf(o.pfa, None)
    if o.wpos == 1:
        e("s_barrier")
    e(f"s_waitcnt vmcnt({o.pfa})")
    for k in range(20):
        e(f"ds_write_b128 v7, v[{72+4*k}:{75+4*k}] offset:{1024*k}")
    e(f"v_add_u32 v7, {P_WR}, v5\nds_write_b128 v7, v[152:155]")
    pf(o.pfb, None)
    e("s_waitcnt lgkmcnt(0)\ns_barrier")
    pf(o.pfc, o.pfw)

    e("L_gemm:")
    e("s_sub_u32 s51, s14, 8")
    e(f"s_lshl_b32 s48, s51, 5\ns_add_u32 s48, s48, {P_W}")
    e("v_lshrrev_b32 v12, 2, v2\nv_lshl_add_u32 v12, v3, 3, v12\nv_lshlrev_b32 v12, 7, v12\nv_and_b32 v13, 3, v2\nv_lshl_add_u32 v12, v13, 3, v12\nv_add_u32 v13, s48, v12")
    e(f"v_lshlrev_b32 v7, 4, v3\nv_add_u32 v7, {P_WR}, v7")
    e("s_nop 1")
    for f in range(10):
        e(f"ds_read_b64_tr_b16 v[{VW+4*f}:{VW+1+4*f}], v13 offset:{4096*f}")
        e(f"ds_read_b64_tr_b16 v[{VW+2+4*f}:{VW+3+4*f}], v13 offset:{4096*f+512}")
        e(f"ds_read_b128 v[{VF+4*f}:{VF+3+4*f}], v7 offset:{64*f}")
    for i in range(48):
        e(f"v_mov_b32 v{VO+i}, 0")
    e("s_waitcnt lgkmcnt(0)")
    for f in range(10):
        for d in range(4):
            half(e, 24, VW + 4 * f + d, 0); half(e, 25, VW + 4 * f + d, 1)
            half(e, 26, VF + 4 * f + d, 0); half(e, 27, VF + 4 * f + d, 1)
            e("v_mul_f32 v24, v24, v26\nv_mul_f32 v25, v25, v27")
            e(f"v_cvt_pk_bf16_f32 v{VW+4*f+d}, v24, v25")
    for d in range(8):
        e(f"v_xor_b32 v{VW+40+d}, 0x80008000, v{VW+32+d}")
    e("v_and_b32 v9, 7, v2")
    for c in range(4):
        e(f"v_add_u32 v8, {4*c}, v3\nv_xor_b32 v8, v8, v2\nv_lshlrev_b32 v8, 4, v8\nv_lshl_add_u32 v8, v2, 11, v8\nv_add_u32 v{16+c}, {L_T}, v8")
        e(f"v_add_u32 v8, {4*c}, v3\nv_xor_b32 v8, v8, v9\nv_lshlrev_b32 v8, 4, v8\nv_lshl_add_u32 v8, v9, 11, v8\nv_add_u32 v{20+c}, {L_T + 65536}, v8")
    e(f"v_mul_u32_u24 v5, 528, v2\nv_lshl_add_u32 v5, v3, 3, v5\ns_lshl_b32 s48, s51, 5\ns_add_u32 s48, s48, {L_COEF}\nv_add_u32 v5, s48, v5")
    e(f"v_lshrrev_b32 v6, 5, v1\nv_lshlrev_b32 v6, 4, v6\nv_lshl_add_u32 v6, v1, 4, v6\nv_add_u32 v6, {L_COEF}, v6")
    e("v_lshlrev_b32 v7, 4, v1")
    e("s_mov_b32 s40, s10\ns_mov_b32 s41, s11\ns_add_u32 s42, s12, s13\ns_lshl_b32 s42, s42, 9\ns_mov_b32 s43, 0x20000\ns_lshl_b32 s44, s12, 9")
    e("v_mov_b32 v14, 0\nv_mov_b32 v12, 1\ns_mov_b32 s45, 0xbfb8aa3b")
    e("s_branch L_gplaced")
    e("L_gnext:")
    e("v_mov_b32 v8, 0\nv_mov_b32 v9, 0\nv_mov_b32 v10, 0\nv_mov_b32 v11, 0")
    e("s_lshl_b32 s48, s51, 10\nv_lshl_add_u32 v13, v1, 4, s48")
    for k in range(1, 16):
        e(f"ds_write_b128 v13, v[8:11] offset:{4096*k}")
    e("s_cmp_eq_u32 s51, 0\ns_cbranch_scc1 L_gn1")
    e("ds_write_b128 v13, v[8:11]\ns_branch L_gn2")
    e("L_gn1:")
    e(f"v_mul_u32_u24 v8, {KSTR}, v1\nv_add_u32 v8, {L_KEY}, v8\nv_cmp_gt_u32 vcc, 40, v1\nv_lshlrev_b32 v13, 2, v1\ns_nop 0\nv_cndmask_b32 v8, 0, v8, vcc")
    e("ds_write_b32 v13, v8")
    e("L_gn2:")
    e("s_waitcnt lgkmcnt(0)\ns_barrier")
    e("L_gplaced:")
    e(f"v_lshlrev_b32 v8, 2, v1\nv_mul_u32_u24 v9, {KSTR}, v1\nv_add_u32 v9, {L_KEY}, v9")
    e("s_waitcnt vmcnt(0) lgkmcnt(0)\ns_barrier")
    check_overflow("L_m", "L_gnext")
    e("s_mov_b32 s67, 1\ns_cmp_eq_u32 s15, 0\ns_cbranch_scc1 L_lastknown")
    e("s_add_u32 s48, s60, 16\ns_cmp_ge_u32 s48, s64\ns_cselect_b32 s67, 1, 0\ns_cmp_eq_u32 s61, 31\ns_cselect_b32 s67, s67, 0")
    e("L_lastknown:")
    blocks = []
    for s in range(4):
        for t in range(4):
            if s == 0 and t == 0: ob, kind = 0, 0
            elif s == t: ob, kind = 0, 1
            elif t == 0: ob, kind = s, 2
            elif s == 0: ob, kind = t, 3
            else:
                j, k = s - 1, t - 1
                i = 3 - j - k
                sign = 1 if (i, j, k) in ((0, 1, 2), (1, 2, 0), (2, 0, 1)) else -1
                ob, kind = 1 + i, 4 if sign > 0 else 5
            blocks.append((s, t, ob, kind))
    NF = 8
    stages = [(h, tau) for h in range(2) for tau in range(3)]
    def finish(tau):
        e(f"s_cmp_eq_u32 s67, 0\ns_cbranch_scc1 L_nofin_{tau}")
        e("s_nop 5")
        a = VO + 16 * tau
        for r in range(4):
            e(f"v_mul_f32 v{8+r}, s45, v{a+r}")
        for r in range(4):
            e(f"v_exp_f32 v{8+r}, v{8+r}")
        e(f"v_cvt_pk_bf16_f32 v24, v{a}, v{a+1}\nv_cvt_pk_bf16_f32 v25, v{a+2}, v{a+3}")
        e(f"ds_write_b64 v5, v[24:25] offset:{16896*tau}")
        for r in range(4):
            e(f"v_add_f32 v{8+r}, 1.0, v{8+r}")
        for r in range(4):
            e(f"v_rcp_f32 v{8+r}, v{8+r}")
        e("s_nop 0")
        for ob in range(1, 4):
            for r in range(4):
                e(f"v_mul_f32 v{a+4*ob+r}, v{a+4*ob+r}, v{8+r}")
            e(f"v_cvt_pk_bf16_f32 v{24+2*ob}, v{a+4*ob}, v{a+4*ob+1}\nv_cvt_pk_bf16_f32 v{25+2*ob}, v{a+4*ob+2}, v{a+4*ob+3}")
            e(f"ds_write_b64 v5, v[{24+2*ob}:{25+2*ob}] offset:{16896*tau + 128*ob}")
        e(f"s_mov_b64 exec, 1\nds_add_rtn_u32 v8, v14, v12 offset:{L_CNT + 224 + 4*tau}\ns_mov_b64 exec, -1")
        e(f"s_waitcnt lgkmcnt(0)\nv_readfirstlane_b32 s48, v8\ns_cmp_lg_u32 s48, 3\ns_cbranch_scc1 L_nofin_{tau}")
        nk = 8 if tau < 2 else 4
        for k in range(nk):
            e(f"ds_read_b128 v[{VF+4*k}:{VF+3+4*k}], v6 offset:{16896*tau + 1056*k}")
        for k in range(nk):
            if k % 4 == 0:
                e(f"s_add_u32 s48, s44, {8192*tau + 1024*k}")
            e(f"s_waitcnt lgkmcnt({nk-1-k})")
            e(f"buffer_store_dwordx4 v[{VF+4*k}:{VF+3+4*k}], v7, s[40:43], s48 offen offset:{1024*(k%4)} {o.ostore}")
        e(f"L_nofin_{tau}:")
    for (h, tau) in stages:
        e("s_mov_b32 s72, 0")
        e(f"L_poll_{h}_{tau}:")
        e(f"ds_read_b32 v8, v14 offset:{L_CNT + 192 + 4*(3*h+tau)}\ns_waitcnt lgkmcnt(0)\nv_readfirstlane_b32 s48, v8")
        e(f"s_cmp_ge_u32 s48, {16 if tau < 2 else 8}\ns_cbranch_scc1 L_go_{h}_{tau}")
        e(f"s_sleep {1 if (h, tau) == stages[-1] else o.psleep}\ns_add_u32 s72, s72, 1\ns_cmp_lt_u32 s72, 0x40000\ns_cbranch_scc1 L_poll_{h}_{tau}\ns_endpgm")
        e(f"L_go_{h}_{tau}:")
        if (h, tau) == stages[-1]:
            stamp(e, o, 9)
        steps = [(s, t, ob, kind, ks) for (s, t, ob, kind) in blocks if t // 2 == h for ks in range(2)]
        def fread(n):
            s, t, ob, kind, ks = steps[n]
            off = (tau % 2) * 32768 + s * 512 + h * 256
            e(f"ds_read_b128 v[{VF+4*(n%NF)}:{VF+3+4*(n%NF)}], v{16 + 2*(t%2) + ks + (4 if tau == 2 else 0)} offset:{off}")
        for n in range(NF - 1):
            fread(n)
        for n in range(len(steps)):
            s, t, ob, kind, ks = steps[n]
            if n + NF - 1 < len(steps):
                fread(n + NF - 1)
            e(f"s_waitcnt lgkmcnt({min(NF - 1, len(steps) - 1 - n)})")
            acc = VO + 16 * tau + 4 * ob
            w = VW + 8 * kind + 4 * ks
            e(f"v_mfma_f32_16x16x32_bf16 v[{acc}:{acc+3}], v[{w}:{w+3}], v[{VF+4*(n%NF)}:{VF+3+4*(n%NF)}], v[{acc}:{acc+3}]")
        if (h, tau) == stages[-1]:
            stamp(e, o, 10)
        if h == 1:
            finish(tau)
    adv_slow("L_gnext", "L_final")
    e("L_final:")
    if o.tstamp:
        e("s_mov_b64 exec, -1\nv_lshlrev_b32 v8, 3, v1\nds_read_b64 v[10:11], v8 offset:256")
        e(f"s_lshl_b32 s48, s2, 9\ns_add_u32 s48, s48, {STAMP_OFF + (2 << 20)}\nv_add_u32 v8, s48, v8\ns_waitcnt lgkmcnt(0)\nglobal_store_dwordx2 v8, v[10:11], s[8:9]")
    if o.stamp:
        e("s_waitcnt vmcnt(0)")
        stamp(e, o, 11)
        stamp_out(e, o)
    e("L_end:\ns_endpgm")

def generate(o):
    e = Asm()
    K = NAME + "_kernel"
    head = HEADER + (f"; @launch kernel={K} grid=(256,1,1) block=(768,1,1) lds={LDS}\n" if o.aslist else f"; @launch grid=(256,1,1) block=(768,1,1) lds={LDS}\n")
    e(f'.amdgcn_target "amdgcn-amd-amdhsa--gfx950"\n.text\n.globl {K}')
    gen(e, o)
    return head + e.text() + KD.format(name=K, vgpr=168, sgpr=102, accum=168)

if __name__ == "__main__":
    kw = {}
    out = f"cdna_kernels/{NAME}.s"
    for a in sys.argv[1:]:
        k, v = a.split("=")
        if k == "out":
            out = v
        else:
            kw[k] = {"True": True, "False": False}.get(v, int(v) if v.lstrip("-").isdigit() else v)
    open(out, "w").write(generate(Opt(**kw)))
    print("wrote", out)
```

```python
import sys
from gen3 import KD, NAME, HEADER, stamp, stamp_init, stamp_out, half, STAMP_OFF

REC_STRIDE = 30848
TAB_STRIDE = 2176
TAB_OFF = 8 << 20
EPOCH_OFF = 10 << 20
assert 256 * REC_STRIDE <= TAB_OFF

class Asm:
    def __init__(self):
        self.s = {}
        self.sec("head")
    def sec(self, name):
        self.l = self.s.setdefault(name, [])
    def __call__(self, s):
        for x in s.split("\n"):
            x = x.strip()
            if x:
                self.l.append(x if x.endswith(":") else "    " + x)
    def text(self, order):
        assert sorted(order) == sorted(self.s), (order, list(self.s))
        return "\n".join(l for n in order for l in self.s[n]) + "\n"

class Opt:
    stamp = False
    tstamp = False
    nt = False
    psleep = 4
    ostore = "sc1"
    aslist = False
    cpf = 1
    tsleep = 1
    tsleep0 = 0
    srcpos = 1
    pbar = 0
    bal = 1
    ackgate = 1
    tord = 1
    tail = 1
    kord = '432'
    wscale = 1
    cpf2 = 0
    wlate = 1
    dpf = 8
    wpf = 0
    spf = 0
    scpf = 0
    w1new = 1
    exp = 0
    po = 'p3222111002'
    py = 'p3322211103'
    trim = 1
    wpos = 1
    wsl = 0
    zlate = 64
    stag = 0
    stagbit = 7
    nodup = 1
    tshare = 2
    xlate = 0
    ostore2 = 'sc1'
    lfirst = 0
    xpf = 0
    xpre = 1
    xpos = 'C2'
    xl = 12
    pmask = 1
    nmap = 0
    prio = 7
    gprio = 3
    split = 5000
    first = 32
    def __init__(self, **kw):
        for k, v in kw.items():
            assert hasattr(self, k), k
            setattr(self, k, v)

CL = 68
NSL = 152
KSTR = 4 * NSL
MID = 4 * CL
L_CNT = 0
C_STAGE, C_STORE, C_MAX, C_TASK, C_FLAG = 320, 352, 368, 372, 512
L_KEY = 1024
KEYLIM = L_KEY + 40 * KSTR
L_COEF = 25600
COFF = L_COEF - 2 * L_KEY
L_T = 74496
assert 2 * KEYLIM + COFF + 8 <= L_T and L_T % 256 == 0
P_HIST = 75776
P_BASES = P_HIST + 3072
P_STAGE = P_BASES + 10240
P_W = P_STAGE + 30720
P_WR = P_W + 40960
LDS = P_WR + 1024
assert LDS >= L_T + 40 * 2048 and LDS <= 163840
OST = [L_COEF - L_KEY, L_COEF - L_KEY + 8448, 0]
C_PERM = C_FLAG
NLC = 12
NGC = NLC // 4
VB, VA, VACC = 72, 48, 24
VW, VO, VF = 32, 80, 128
VC0, VC1 = VB + 32, VB + 80

def gen(e, o):
    TS = o.tshare
    TROW = 2048 * TS + 128
    def vrow(dst, p, tmp):
        if TS == 1:
            e(f"v_mul_u32_u24 v{dst}, {TAB_STRIDE}, v{p}")
        else:
            lg = TS.bit_length() - 1
            e(f"v_lshrrev_b32 v{tmp}, {5 + lg}, v{p}\nv_lshlrev_b32 v{tmp}, 5, v{tmp}\nv_and_or_b32 v{tmp}, v{p}, 31, v{tmp}\nv_mul_u32_u24 v{tmp}, {TROW}, v{tmp}")
            e(f"v_bfe_u32 v{dst}, v{p}, 5, {lg}\nv_lshl_add_u32 v{dst}, v{dst}, {7 - lg}, v{tmp}")
    nt = " nt" if o.nt else ""
    K = NAME + "_kernel"
    e(f".p2align 8\n.type {K},@function\n{K}:")
    e("s_cmp_ge_u32 s2, 256\ns_cbranch_scc1 L_end")
    stamp_init(e, o)
    e("s_load_dwordx8 s[16:23], s[0:1], 8")
    e("s_load_dwordx2 s[8:9], s[0:1], 88")
    e("s_load_dwordx2 s[4:5], s[0:1], 0")
    e("s_load_dwordx4 s[24:27], s[0:1], 40")
    e("s_load_dwordx2 s[28:29], s[0:1], 56")
    e("s_load_dwordx2 s[10:11], s[0:1], 72")
    e("v_lshrrev_b32 v4, 6, v0\nv_and_b32 v1, 63, v0")
    e("v_min_u32 v5, 624, v0")
    e("v_readfirstlane_b32 s14, v4")
    e("s_mul_i32 s48, s2, 625\nv_add_u32 v5, s48, v5")
    e("v_lshlrev_b32 v6, 4, v5")
    e(f"v_lshlrev_b32 v26, 2, v0\nv_add_u32 v26, {P_HIST}, v26\nv_mov_b32 v64, 0")
    e("ds_write_b32 v26, v64")
    e("s_cmp_lt_u32 s14, 10\ns_cbranch_scc1 L_prod")
    if o.scpf:
        n = 160 // (2 * o.scpf)
        e("s_getpc_b64 s[46:47]\nL_pc:")
        e(f"s_lshr_b32 s48, s2, 2\ns_and_b32 s48, s48, {2 * o.scpf - 2}\ns_add_u32 s48, s48, s14\ns_sub_u32 s48, s48, 10\ns_mul_i32 s48, s48, {n * 128}")
        e("s_add_u32 s46, s46, s48\ns_addc_u32 s47, s47, 0\ns_waitcnt lgkmcnt(0)")
        for i in range(n):
            e(f"s_load_dword s36, s[46:47], {128*i}")
        e("s_barrier\ns_branch L_helper")
    elif o.dpf:
        n = 192 // o.dpf
        e("s_getpc_b64 s[46:47]\nL_pc:")
        e(f"s_lshr_b32 s48, s2, 3\ns_and_b32 s48, s48, {o.dpf - 1}\ns_mul_i32 s49, s48, {n * 128}\nv_lshl_add_u32 v70, v1, 7, s49")
        e(f"s_mov_b64 exec, {hex((1 << n) - 1)}" if n <= 32 else f"s_mov_b32 exec_hi, {hex((1 << (n - 32)) - 1)}")
        e("s_cmp_eq_u32 s14, 11\ns_cbranch_scc1 L_wpf")
        e("v_min_u32 v70, L_cold-L_pc, v70\nglobal_load_dword v71, v70, s[46:47]\ns_branch L_pfd")
        e("L_wpf:")
        if o.wpf:
            e("v_min_u32 v69, 16380, v70\ns_waitcnt lgkmcnt(0)\nglobal_load_dword v71, v70, s[28:29]\nglobal_load_dword v71, v69, s[26:27]")
        e("L_pfd:\ns_mov_b64 exec, -1")
    elif o.cpf:
        e("s_getpc_b64 s[46:47]\nL_pc:")
        e("v_subrev_u32 v70, 640, v0\nv_lshlrev_b32 v70, 7, v70\nv_min_u32 v69, " + ("L_late" if o.cpf2 else "L_cold") + "-L_pc, v70")
        e("global_load_dword v71, v69, s[46:47]")
    e("s_waitcnt lgkmcnt(0)\ns_barrier")
    e("s_branch L_helper\nL_prod:")
    e("s_waitcnt lgkmcnt(0)")
    e(f"global_load_dwordx4 v[8:11], v6, s[22:23]{nt}")
    e(f"s_add_u32 s30, s8, {EPOCH_OFF}\ns_addc_u32 s31, s9, 0\ns_load_dword s73, s[30:31], 0")
    e("v_lshlrev_b32 v7, 3, v5\nv_mul_u32_u24 v5, 24, v5")
    if o.srcpos != 1:
        e(f"global_load_dwordx4 v[12:15], v6, s[20:21]{nt}")
    if o.srcpos != 2:
        e("s_barrier")
    def payload(a):
        if o.srcpos == 1:
            e(f"global_load_dwordx4 v[12:15], v6, s[20:21]{nt}")
        e(f"global_load_dwordx2 v[16:17], {a}, s[18:19]{nt}")
        e(f"global_load_dwordx4 v[20:23], v5, s[16:17]{nt}")
        e(f"global_load_dwordx2 v[24:25], v5, s[16:17] offset:16{nt}")
    if o.stag:
        e(f"v_mov_b32 v18, v7\ns_bitcmp1_b32 s2, {o.stagbit}\ns_cbranch_scc1 L_st1")
    payload("v7")
    if o.stag:
        e("L_st1:")
    if o.srcpos == 2:
        e("s_barrier")
    def common_consts():
        e("v_and_b32 v2, 15, v0\nv_lshrrev_b32 v3, 4, v1")
        e("s_and_b32 s3, s2, 7\ns_lshl_b32 s3, s3, 5\ns_lshr_b32 s12, s2, 3\ns_add_u32 s3, s3, s12")
        e("s_mov_b32 s6, 5120000\ns_mov_b32 s7, 0x20000")
        e("s_mul_i32 s12, s3, 625\ns_add_u32 s13, s12, 640\ns_add_u32 s12, s12, 15\ns_lshr_b32 s12, s12, 4\ns_lshr_b32 s13, s13, 4\ns_sub_u32 s13, s13, s12")
        e("s_mov_b32 s15, 0\ns_mov_b32 s60, 0\ns_mov_b32 s61, 0")
        e(f"s_lshr_b32 s75, s3, 2\ns_lshl_b32 s75, s75, 4\ns_and_b32 s58, s3, 1\ns_lshl_b32 s58, s58, 3\ns_add_u32 s75, s75, s58")
        e(f"s_and_b32 s58, s3, 2\ns_lshl_b32 s58, s58, 9\ns_add_u32 s75, s75, s58")
        if o.tshare > 1:
            PC = 128 // o.tshare
            e(f"s_and_b32 s58, s75, {PC - 1}\ns_sub_u32 s75, s75, s58\ns_mul_i32 s75, s75, {o.tshare}\ns_add_u32 s75, s75, s58")
        e(f"s_add_u32 s75, s75, {TAB_OFF}")
    def zero_lists_all():
        e("v_mov_b32 v65, 0\nv_mov_b32 v66, 0\nv_mov_b32 v67, 0\nv_lshlrev_b32 v68, 4, v0")
        for k in range(6):
            e(f"ds_write_b128 v68, v[64:67] offset:{1024 + 12288*k}")
    zero_lists_all()
    common_consts()
    e("v_mov_b32 v7, 1\nv_lshlrev_b32 v27, 4, v1")
    e(f"s_lshl_b32 s48, s14, 10\ns_add_u32 s48, s48, {P_BASES - P_HIST}")
    e("v_mov_b32 v69, 625\nv_cmp_lt_u32 s[62:63], v0, v69")
    e(f"v_mov_b32 v69, {P_HIST}\ns_mov_b32 s50, 0x3fc")
    if o.stag:
        e(f"s_bitcmp0_b32 s2, {o.stagbit}\ns_cbranch_scc1 L_st2\ns_waitcnt vmcnt(0)")
        if o.stag == 1:
            payload("v18")
        e("L_st2:")
    e("s_waitcnt vmcnt(4)")
    if not (o.exp & 16):
        stamp(e, o, 1)
    for i in range(4):
        e(f"v_mul_u32_u24 v{28+i}, 214749, v{8+i}")
    e("s_mov_b64 exec, s[62:63]")
    for i in range(4):
        e(f"v_lshrrev_b32 v{28+i}, 21, v{28+i}\nv_and_or_b32 v{28+i}, v{28+i}, s50, v69")
        e(f"ds_add_rtn_u32 v{32+i}, v{28+i}, v7")
    e("s_mov_b64 exec, -1")
    e("v_add_u32 v26, v27, v69")
    e("s_waitcnt lgkmcnt(0)\ns_barrier")
    if o.stag == 2:
        e(f"s_bitcmp0_b32 s2, {o.stagbit}\ns_cbranch_scc1 L_st3")
        payload("v18")
        e("L_st3:")
    e("ds_read_b128 v[56:59], v26")
    e("s_add_u32 s73, s73, 0x9e3779b1\ns_mul_i32 s74, s73, 0x01000193\ns_and_b32 s74, s74, 0xff000000")
    e(f"s_mul_i32 s49, s2, {REC_STRIDE}")
    stamp(e, o, 2)
    e("s_waitcnt lgkmcnt(0)")
    e("v_add_u32 v37, v56, v57\nv_add_u32 v38, v58, v59\nv_add_u32 v36, v37, v38")
    e("v_mov_b32 v39, v36\ns_nop 1")
    for sh in (1, 2, 4, 8):
        e(f"v_add_u32_dpp v39, v39, v39 row_shr:{sh} row_mask:0xf bank_mask:0xf\ns_nop 1")
    e("v_add_u32_dpp v39, v39, v39 row_bcast:15 row_mask:0xa bank_mask:0xf\ns_nop 1")
    e("v_add_u32_dpp v39, v39, v39 row_bcast:31 row_mask:0xc bank_mask:0xf")
    e("v_sub_u32 v60, v39, v36")
    e("v_add_u32 v61, v60, v56\nv_add_u32 v62, v60, v37\nv_add_u32 v63, v62, v58")
    e("v_add_u32 v36, s48, v26")
    e("ds_write_b128 v36, v[60:63]")
    e("s_mov_b64 exec, s[62:63]")
    for i in range(4):
        e(f"v_add_u32 v{28+i}, s48, v{28+i}")
    for i in range(4):
        e(f"ds_read_b32 v{36+i}, v{28+i}")
    e(f"v_mov_b32 v69, {P_STAGE}")
    e("s_waitcnt lgkmcnt(0)")
    for i in range(4):
        e(f"v_add_u32 v{32+i}, v{32+i}, v{36+i}\nv_mad_u32_u24 v{32+i}, v{32+i}, 12, v69")
    e("s_waitcnt vmcnt(3)")
    for i in range(4):
        e(f"v_cmp_le_u32 vcc, {o.split}, v{12+i}\nv_lshl_or_b32 v{48+i}, v{8+i}, 17, v{12+i}\nv_or_b32 v52, 0x10000, v{48+i}\nv_cndmask_b32 v{48+i}, v{48+i}, v52, vcc")
        e(f"ds_write_b32 v{32+i}, v{48+i} offset:8")
    e("s_waitcnt vmcnt(0)")
    stamp(e, o, 3)
    for i in range(4):
        half(e, 36, 16 + i // 2, i % 2)
        for j in range(3):
            n = 3 * i + j
            half(e, 37 + j, 20 + n // 2, n % 2)
        for j in range(3):
            e(f"v_mul_f32 v{37+j}, v36, v{37+j}")
        e(f"v_cvt_pk_bf16_f32 v{40+2*i}, v36, v37\nv_cvt_pk_bf16_f32 v{41+2*i}, v38, v39")
        e(f"ds_write2_b32 v{32+i}, v{40+2*i}, v{41+2*i} offset0:0 offset1:1")
    e("s_mov_b64 exec, -1")
    e(f"v_add_u32 v5, {P_STAGE}, v68\nv_add_u32 v4, s49, v68\nv_add_u32 v6, 10240, v4\nv_add_u32 v7, 20480, v4")
    e("s_waitcnt lgkmcnt(0)\ns_barrier")
    stamp(e, o, 4)
    e("ds_read_b128 v[32:35], v5\nds_read_b128 v[8:11], v5 offset:10240\nds_read_b128 v[12:15], v5 offset:20480")
    e("s_waitcnt lgkmcnt(2)\nglobal_store_dwordx4 v4, v[32:35], s[8:9] sc1")
    e("s_waitcnt lgkmcnt(1)\nglobal_store_dwordx4 v6, v[8:11], s[8:9] sc1")
    if o.trim:
        e("v_cmp_gt_u32 vcc, 600, v0\ns_and_b64 exec, exec, vcc")
    e("s_waitcnt lgkmcnt(0)\nglobal_store_dwordx4 v7, v[12:15], s[8:9] sc1")
    if o.trim:
        e("s_mov_b64 exec, -1")
    e("s_cmp_ge_u32 s14, 8\ns_cbranch_scc1 L_p89")
    e("v_and_b32 v28, 7, v2\nv_lshl_add_u32 v28, v28, 2, v3\nv_lshl_add_u32 v28, v28, 3, s14")
    vrow(30, 28, 29)
    e("v_add_u32 v30, s75, v30")
    if o.w1new:
        e(f"v_mul_u32_u24 v64, {REC_STRIDE}, v28\nv_lshrrev_b32 v65, 3, v2\nv_add_u32 v65, 16, v65\nv_mad_u32_u24 v64, v65, 12, v64")
    e(f"v_lshl_add_u32 v28, v3, 3, s14\nv_mul_u32_u24 v28, {REC_STRIDE}, v28\nv_mul_u32_u24 v29, 12, v2\nv_add_u32 v31, v28, v29")
    e(f"s_mov_b32 s68, s8\ns_mov_b32 s69, s9\ns_mov_b32 s70, {TAB_OFF}\ns_mov_b32 s71, 0x20000")
    for i in range(96 - o.zlate):
        e(f"v_mov_b32 v{VB+i}, 0")
    e("v_add_u32 v26, 16, v2")
    if o.xpos[0] == "C" and o.xl:
        NCW = 5 if o.xlate else 15
        e(f"s_lshl_b32 s48, s2, 3\ns_add_u32 s48, s48, s14\ns_mul_i32 s48, s48, {NCW}\nv_add_u32 v27, s48, v1")
        e("v_cmp_gt_u32 vcc, 10000, v27\nv_mov_b32 v28, 0xffd8f100\nv_mov_b32 v29, 2560000\nv_cndmask_b32 v28, v28, v29, vcc")
        e("s_and_b32 s48, s2, 7\ns_mul_i32 s48, s48, 5\ns_sub_u32 s48, s48, 16\nv_add_u32 v29, s48, v1\nv_subrev_u32 v36, 40, v29\nv_min_u32 v29, v29, v36")
        e("s_and_b32 s48, s2, 0xf8\ns_add_u32 s48, s48, s14\ns_mul_i32 s48, s48, 40\nv_add_u32 v29, s48, v29")
        e("v_cmp_gt_u32 vcc, 16, v1\ns_nop 1\nv_cndmask_b32 v27, v29, v27, vcc\nv_cndmask_b32 v28, 0, v28, vcc")
        e("v_lshrrev_b32 v29, 1, v27\nv_lshl_add_u32 v28, v29, 9, v28\nv_and_b32 v27, 1, v27\nv_lshl_add_u32 v27, v27, 7, v28")
        e(f"s_mov_b32 s48, {((((1 << o.xl) - 1) << 16) | ((1 << NCW) - 1)) & 0xffffffff}\ns_mov_b32 s49, {(((1 << o.xl) - 1) << 16) >> 32}\nv_mov_b32 v29, 0x40000000\nv_cndmask_b32 v27, v29, v27, s[48:49]")
    elif o.xpos[0] == "C":
        e("s_lshl_b32 s48, s2, 3\ns_add_u32 s48, s48, s14\ns_mul_i32 s48, s48, 2560\nv_lshl_add_u32 v27, v1, 7, s48")
        e("v_cmp_gt_u32 vcc, 20, v1\nv_mov_b32 v29, 0x40000000\ns_nop 0\nv_cndmask_b32 v27, v29, v27, vcc")
    e("v_and_b32 v20, 3, v2\nv_mul_u32_u24 v20, 0x5555, v20")
    e("v_lshl_add_u32 v21, v3, 5, v2")
    e("v_mov_b32 v22, 1\nv_mov_b32 v23, 4")
    e("v_lshlrev_b32 v16, 4, v2\nv_mov_b32 v17, 512")
    e("v_lshlrev_b32 v18, 2, v3\nv_lshl_add_u32 v18, v2, 4, v18")
    e("v_lshrrev_b32 v19, 1, v3\nv_lshlrev_b32 v19, 5, v19\nv_and_b32 v24, 1, v3\nv_lshl_add_u32 v19, v24, 4, v19")
    e(f"v_lshrrev_b32 v24, 2, v2\nv_lshl_add_u32 v19, v24, 1, v19\nv_add_u32 v19, {COFF}, v19")
    e(f"s_lshl_b32 s50, s12, 3\ns_sub_u32 s50, {L_CNT}, s50")
    e(f"v_mov_b32 v24, 0x40000000\nv_mov_b32 v25, {KEYLIM}\ns_mov_b32 s59, {L_KEY}")
    e("s_waitcnt vmcnt(0)")
    stamp(e, o, 5)
    e("s_barrier")
    if o.ackgate:
        e("s_barrier")
    for i in range(96 - o.zlate, 96):
        e(f"v_mov_b32 v{VB+i}, 0")
    if o.tsleep0:
        e(f"s_sleep {o.tsleep0}")
    if o.exp & 16:
        stamp(e, o, 1)
    if o.nodup:
        e("s_mov_b32 exec_lo, 0x00ff00ff\ns_mov_b32 exec_hi, 0x00ff00ff")
    e("global_load_dwordx2 v[4:5], v30, s[8:9] sc1")
    e("s_mov_b32 s72, 0")
    e("L_tpoll:")
    e("s_waitcnt vmcnt(0)")
    e("v_and_b32 v6, 0xff000000, v4\nv_cmp_ne_u32 vcc, s73, v5\nv_cmp_ne_u32 s[48:49], s74, v6\ns_or_b64 vcc, vcc, s[48:49]")
    e("s_cbranch_scc0 L_tready")
    if o.tsleep:
        e(f"s_sleep {o.tsleep}")
    if o.pmask:
        e("s_mov_b64 exec, vcc")
    e("global_load_dwordx2 v[4:5], v30, s[8:9] sc1")
    e("s_add_u32 s72, s72, 1\ns_cmp_lt_u32 s72, 0x10000\ns_cbranch_scc1 L_tpoll\ns_endpgm")
    e("L_tready:")
    e("s_mov_b64 exec, -1")
    if o.nodup:
        e("v_mov_b32_dpp v4, v4 row_shr:8 row_mask:0xf bank_mask:0xc")
    e("v_and_b32 v5, 0xfff, v4\nv_bfe_u32 v4, v4, 12, 12\nv_mul_u32_u24 v5, 12, v5\ns_nop 0")
    def rank(r):
        e(f"v_bfe_u32 v15, v{r+2}, 16, 1\nv_mad_u32_u16 v{r+3}, v{r+2}, v23, s50 op_sel:[1,0,0,0]\nv_lshl_add_u32 v15, v15, 3, -4")
        e(f"ds_add_rtn_u32 v{r+3}, v{r+3}, v15")
    def place(r):
        e(f"v_med3_u32 v{r+3}, v{r+3}, s59, v25\nv_lshlrev_b32 v8, 1, v{r+3}")
        e(f"ds_write_b32 v{r+3}, v{r+2}")
        e(f"ds_write_b64 v8, v[{r}:{r+1}] offset:{COFF}")
    XP = "buffer_load_dword v167, v27, s[4:7], 0 offen"
    if o.w1new:
        stamp(e, o, 6)
        e("v_sub_u32 v65, v4, v65\nv_add_u32 v64, v5, v64\ns_mov_b32 s51, 0")
        for r in range(8):
            e(f"v_cmp_lt_i32 s[{32+2*r}:{33+2*r}], {2*r}, v65\ns_and_b64 exec, exec, s[{32+2*r}:{33+2*r}]\ns_cbranch_scc0 L_x1")
            e(f"global_load_dwordx3 v[{VB+4*r}:{VB+2+4*r}], v64, s[8:9] offset:{24*r} sc1\ns_mov_b32 s51, {r+1}")
        e("L_x1:\ns_mov_b64 exec, -1")
        for i in range(8):
            e(f"v_mov_b32_dpp v9, v4 row_newbcast:{i} row_mask:0xf bank_mask:0xf")
            e(f"v_cmp_lt_u32 s[{16+2*i}:{17+2*i}], v2, v9")
            e(f"v_add_u32_dpp v{10+i%2}, v5, v31 row_newbcast:{i} row_mask:0xf bank_mask:0xf")
            e(f"v_add_u32 v31, {32*REC_STRIDE}, v31")
            e(f"v_cndmask_b32 v{10+i%2}, v24, v{10+i%2}, s[{16+2*i}:{17+2*i}]")
            e(f"buffer_load_dwordx3 v[{32+4*i}:{34+4*i}], v{10+i%2}, s[68:71], 0 offen sc1")
        e(f"v_mov_b32 v14, 0\nv_cmp_lt_u32 vcc, 32, v4\ns_and_saveexec_b64 s[48:49], vcc")
        e(f"ds_max_u32 v14, v4 offset:{C_MAX}")
        def two(f, q):
            for i in (2 * q, 2 * q + 1):
                e(f"s_mov_b64 exec, s[{16+2*i}:{17+2*i}]")
                f(32 + 4 * i)
        def extra(f, lbl):
            for r in range(8):
                e(f"s_cmp_le_u32 s51, {r}\ns_cbranch_scc1 {lbl}\ns_mov_b64 exec, s[{32+2*r}:{33+2*r}]")
                f(VB + 4 * r)
            e(f"{lbl}:")
        e("s_waitcnt vmcnt(8)")
        extra(rank, "L_x2")
        e("s_waitcnt vmcnt(6) lgkmcnt(0)")
        two(rank, 0)
        extra(place, "L_x3")
        for q in range(1, 4):
            e(f"s_waitcnt vmcnt({6 - 2*q}) lgkmcnt(0)")
            if q == 3:
                stamp(e, o, 7)
            two(rank, q)
            if q == 3 and o.xpos == "C2":
                e("s_mov_b64 exec, -1\n" + XP)
            two(place, q - 1)
        e("s_waitcnt lgkmcnt(0)")
        two(place, 3)
    else:
        def addr(i, dst):
            e(f"v_mov_b32_dpp v9, v4 row_newbcast:{i} row_mask:0xf bank_mask:0xf")
            e(f"v_add_u32_dpp v{35+4*i}, v5, v31 row_newbcast:{i} row_mask:0xf bank_mask:0xf")
            e(f"v_cmp_lt_u32 s[{16+2*i}:{17+2*i}], v2, v9")
            e(f"v_cmp_lt_u32 s[{32+2*i}:{33+2*i}], v26, v9")
            e(f"v_add_u32 v31, {32*REC_STRIDE}, v31")
            e(f"v_cndmask_b32 v{dst}, v24, v{35+4*i}, s[{16+2*i}:{17+2*i}]")
        if o.pbar:
            for i in range(8):
                addr(i, 64 + i)
            e("s_barrier")
            stamp(e, o, 6)
            for i in range(8):
                e(f"buffer_load_dwordx3 v[{32+4*i}:{34+4*i}], v{64+i}, s[68:71], 0 offen sc1")
        else:
            stamp(e, o, 6)
            for i in range(8):
                addr(i, 10 + i % 2)
                e(f"buffer_load_dwordx3 v[{32+4*i}:{34+4*i}], v{10+i%2}, s[68:71], 0 offen sc1")
        for i in range(8):
            e(f"s_cmp_eq_u64 s[{32+2*i}:{33+2*i}], 0\ns_cbranch_scc1 L_now1_{i}")
            e(f"s_mov_b64 exec, s[{32+2*i}:{33+2*i}]")
            e(f"global_load_dwordx3 v[{VB+4*i}:{VB+2+4*i}], v{35+4*i}, s[8:9] offset:192 sc1")
            e(f"L_now1_{i}:")
        e("s_mov_b64 exec, -1")
        e(f"v_mov_b32 v14, 0\nv_cmp_lt_u32 vcc, 32, v4\ns_and_saveexec_b64 s[48:49], vcc")
        e(f"ds_max_u32 v14, v4 offset:{C_MAX}")
        if o.xpos == "C0":
            e("s_mov_b64 exec, -1\n" + XP)
        for hf in range(2):
            e(f"s_waitcnt vmcnt({(4 if hf == 0 else 0) + (1 if o.xpos == 'C0' or (o.xpos == 'C1' and hf == 1) else 0)})")
            if o.xpos == f"C{hf+1}":
                e("s_mov_b64 exec, -1\n" + XP)
            if hf == 1:
                stamp(e, o, 7)
            for i in range(4 * hf, 4 * hf + 4):
                e(f"s_mov_b64 exec, s[{16+2*i}:{17+2*i}]")
                rank(32 + 4 * i)
            if hf == 1:
                for i in range(8):
                    e(f"s_cmp_eq_u64 s[{32+2*i}:{33+2*i}], 0\ns_cbranch_scc1 L_nor1_{i}")
                    e(f"s_mov_b64 exec, s[{32+2*i}:{33+2*i}]")
                    rank(VB + 4 * i)
                    e(f"L_nor1_{i}:")
            e("s_waitcnt lgkmcnt(0)")
            for i in range(4 * hf, 4 * hf + 4):
                e(f"s_mov_b64 exec, s[{16+2*i}:{17+2*i}]")
                place(32 + 4 * i)
        for i in range(8):
            e(f"s_cmp_eq_u64 s[{32+2*i}:{33+2*i}], 0\ns_cbranch_scc1 L_nop1_{i}")
            e(f"s_mov_b64 exec, s[{32+2*i}:{33+2*i}]")
            place(VB + 4 * i)
            e(f"L_nop1_{i}:")
    if o.xpos == "C3":
        e("s_mov_b64 exec, -1\n" + XP)
    e("L_placed:")
    e("s_mov_b64 exec, -1")
    e(f"v_lshlrev_b32 v8, 3, v1\nv_mul_u32_u24 v9, {KSTR}, v1\nv_add_u32 v9, {L_KEY + MID}, v9")
    e("s_waitcnt lgkmcnt(0)\ns_barrier")
    stamp(e, o, 8)
    if o.stamp:
        e("s_memtime s[76:77]\ns_waitcnt lgkmcnt(0)\ns_mov_b32 s98, s76")
    def check_read():
        e(f"ds_read_b64 v[10:11], v8 offset:{L_CNT}\ns_waitcnt lgkmcnt(0)")
        e(f"v_readlane_b32 s65, v10, {C_MAX // 8}\nv_add_u32 v10, 4, v10\nv_sub_u32 v15, v11, v10")
    def check_test(lbl, lbl_restart):
        e(f"s_cmp_lg_u32 s15, 0\ns_cbranch_scc1 {lbl}_ok")
        e(f"v_sub_u32 v11, v11, v9\nv_sub_u32 v9, v9, v10\nv_max_u32 v9, v9, v11")
        e(f"v_cmp_lt_u32 vcc, {4*CL}, v9\nv_mov_b32 v9, 512\nv_cmp_lt_u32 s[48:49], v9, v15\ns_or_b64 vcc, vcc, s[48:49]")
        e("s_and_b32 vcc_hi, vcc_hi, 0xff\ns_or_b32 s48, vcc_lo, vcc_hi\ns_or_b32 s48, s48, s65")
        e(f"s_cmp_eq_u32 s48, 0\ns_cbranch_scc1 {lbl}_ok")
        e("s_mov_b32 s15, 1\ns_max_u32 s64, s65, 32\ns_min_u32 s64, s64, 2560")
        e(f"s_waitcnt vmcnt(0) lgkmcnt(0)\ns_barrier\ns_branch {lbl_restart}")
        e(f"{lbl}_ok:")
    def check_overflow(lbl, lbl_restart):
        check_read()
        check_test(lbl, lbl_restart)
    SC, SL, STB, SX, SS = 52, 79, 16, 21, 26
    NSTEP = 8 if o.nmap == 0 else 4
    KEYR = lambda k, i: 2 + 2 * k + i // 16
    AR = [12, 24, 28]
    ACC = lambda k: 32 + 8 * k
    BUF = [VB, VB + 48]
    def scale(r):
        e(f"v_mul_u32_u24_sdwa v{r}, v{r}, v17 dst_sel:DWORD dst_unused:UNUSED_PAD src0_sel:WORD_0 src1_sel:DWORD")
    def load(k, i, dst, hs, tmp=(17, 18)):
        e(f"v_add_u32_dpp v{tmp[i%2]}, v{KEYR(k, i)}, v16 row_newbcast:{i%16} row_mask:0xf bank_mask:0xf")
        e(f"buffer_load_dwordx4 v[{dst}:{dst+3}], v{tmp[i%2]}, s[4:7], {hs} offen")
    def aread(G, a):
        for r in range(4):
            e(f"ds_read_u16 v{a+r}, v22 offset:{128*G + 64*(r%2) + 8*(r//2)}")
    def swaps(q):
        if o.exp & 2:
            return
        e(f"v_swap_b32 v{q+2}, v{q+8}\nv_swap_b32 v{q+3}, v{q+9}\nv_swap_b32 v{q+6}, v{q+12}\nv_swap_b32 v{q+7}, v{q+13}")
    def mm(k, a, q):
        if o.exp & 1:
            return
        e(f"v_smfmac_f32_16x16x64_bf16 v[{ACC(k)}:{ACC(k)+3}], v[{a}:{a+3}], v[{q}:{q+7}], v20")
        e(f"v_smfmac_f32_16x16x64_bf16 v[{ACC(k)+4}:{ACC(k)+7}], v[{a}:{a+3}], v[{q+8}:{q+15}], v20")
    def flush_l(k):
        a = ACC(k)
        l = [f"v_xor_b32 v23, s{SX+k}, v21", f"v_lshl_add_u32 v23, v23, 4, s{STB+k}"]
        l += [f"v_cvt_pk_bf16_f32 v{a+d}, v{a+2*d}, v{a+2*d+1}" for d in range(4)]
        l += [f"ds_write_b128 v23, v[{a}:{a+3}]", f"v_mov_b32 v{a+4}, s{SS+k}", f"s_mov_b64 exec, 1\nds_inc_u32 v{a+4}, v19\ns_mov_b64 exec, -1"]
        l += [f"v_mov_b32 v{a+(i+5)%8}, 0" for i in range(8)]
        return l
    def flush(k):
        e("\n".join(flush_l(k)))
    def aread_l(G, a):
        if o.exp & 4:
            return []
        return [f"ds_read_u16 v{a+r}, v22 offset:{128*G + 64*(r%2) + 8*(r//2)}" for r in range(4)]
    def others(t, sfx):
        sp, k = divmod(t, 5)
        l = [f"v_add_u32 v22, s{SL+k}, v19"] + aread_l(2 * sp, AR[0]) + aread_l(2 * sp + 1, AR[1])
        l.append(f"s_cmp_le_u32 s{SC+k}, {256 if sp else 320}\ns_cbranch_scc1 L_na{t}{sfx}\n" + "\n".join(aread_l(4 if sp else 5, AR[2])) + f"\nL_na{t}{sfx}:"
                 if sp or sfx else f"s_cmp_gt_u32 s{SC+k}, 320\ns_cbranch_scc1 L_xa{t}\nL_na{t}:")
        if t >= 6:
            l += flush_l(k - 1)
        return l
    check_read()
    GRP = [0, 1, 4, 2, 3] if o.tord else [0, 1, 2, 3, 4]
    e("s_mov_b32 s57, s14\ns_add_u32 s58, s14, 8")
    for k in range(2):
        e(f"v_readlane_b32 s{SL+k}, v10, s{57+k}\nv_readlane_b32 s{SC+k}, v15, s{57+k}\ns_nop 0")
        e(f"v_add_u32 v{12+k}, s{SL+k}, v18")
        e(f"ds_read2st64_b32 v[{2+2*k}:{3+2*k}], v{12+k} offset0:0 offset1:1")
    check_test("L_g", "L_slow_load")
    e("s_waitcnt lgkmcnt(1)")
    scale(2); scale(3)
    e("s_mov_b32 s84, 0\ns_mov_b32 s85, 256")
    if o.prio:
        e("s_setprio 3")
    for i in range(8):
        load(0, i, BUF[0] + 4 * i, "0", tmp=(13, 14))
    e(f"s_cmp_le_u32 s{SC}, 320\ns_cbranch_scc1 L_nx0")
    for i in range(4):
        load(0, 20 + i, BUF[0] + 32 + 4 * i, "0", tmp=(13, 14))
    e("L_nx0:")
    if o.bal:
        e("s_cmp_eq_u32 s15, 0\ns_cselect_b32 s48, -1, 0\nv_and_b32 v27, s48, v15\nv_lshl_or_b32 v24, v27, 6, v1\nv_mov_b32 v25, 0")
        e("v_add_u32_dpp v26, v27, v27 row_shl:8 row_mask:0xf bank_mask:0xf")
        for j in range(24):
            e(f"v_readlane_b32 s{16+j}, v24, {16+j}")
        e("v_lshl_or_b32 v26, v26, 3, v1")
        for j in range(0, 24, 3):
            for d in range(3):
                e(f"v_cmp_gt_u32 s[{40+2*d}:{41+2*d}], s{16+j+d}, v24")
            for d in range(3):
                e(f"v_addc_co_u32 v25, vcc, 0, v25, s[{40+2*d}:{41+2*d}]")
        e("v_readlane_b32 s48, v26, s14\ns_nop 1\nv_cmp_gt_u32 vcc, s48, v26\ns_and_b32 s48, vcc_lo, 0xff\ns_bcnt1_i32_b32 s48, s48")
        for k in map(int, str(o.kord)):
            e(f"v_cmp_eq_u32 vcc, s48, v25\ns_and_b32 vcc_lo, vcc_lo, 0xffff0000\ns_and_b32 vcc_hi, vcc_hi, 0xff\ns_ff1_i32_b64 s{38+k}, vcc\ns_add_u32 s48, s48, 8")
    else:
        for k in range(2, 5):
            e(f"s_add_u32 s{38+k}, s14, {8*k}")
    e(f"s_lshl_b32 s48, s14, 2\nv_mov_b32 v24, s48")
    for k in range(2, 5):
        e(f"v_readlane_b32 s{SL+k}, v10, s{38+k}\nv_readlane_b32 s{SC+k}, v15, s{38+k}\ns_lshl_b32 s48, s{38+k}, 9")
        e(f"v_add_u32 v{10+k}, s{SL+k}, v18\nv_mov_b32 v{23+k}, s48")
    for k in range(2, 5):
        e(f"ds_read2st64_b32 v[{2+2*k}:{3+2*k}], v{10+k} offset0:0 offset1:1")
    e("s_mov_b64 exec, 1")
    for k in range(2, 5):
        e(f"ds_write_b32 v24, v{23+k} offset:{C_PERM + 32*GRP[k]}")
    e("s_mov_b64 exec, -1")
    for i in range(40):
        e(f"v_mov_b32 v{32+i}, 0")
    for k in range(5):
        e(f"s_lshl_b32 s{SL+k}, s{SL+k}, 1\ns_lshl_b32 s{STB+k}, s14, 11\ns_add_u32 s{STB+k}, s{STB+k}, {L_T + 16384*GRP[k]}\ns_add_u32 s{SX+k}, s14, {8*(GRP[k] & 1)}")
        e(f"s_mov_b32 s{SS+k}, {C_STAGE + 4*(GRP[k] >> 1)}")
    e(f"s_mov_b32 s86, s{SC}")
    e("s_waitcnt lgkmcnt(0)")
    for r in range(4, 12):
        scale(r)
    e("s_branch L_hloop")
    e.sec("loop")
    e("L_late:\nL_hloop:")
    for t in range(10):
        sp, k = divmod(t, 5)
        nsp, nk = divmod((t + 1) % 10, 5)
        cb, nb = BUF[t % 2], BUF[(t + 1) % 2]
        oth = others(t, "")
        if not o.lfirst:
            e("\n".join(oth)); oth = []
        def some(i, n):
            e("\n".join(oth[len(oth) * i // n:len(oth) * (i + 1) // n]))
        if o.po:
            a_, b_ = o.po[1 + t], o.py[1 + t]
            if a_ == b_:
                e(f"s_setprio {a_}")
            else:
                e(f"s_setprio {b_}\ns_cmp_ge_u32 s14, 4\ns_cbranch_scc1 L_pr{t}\ns_setprio {a_}\nL_pr{t}:")
        elif o.prio >= 2:
            pat = {2: [3, 2, 1, 0, 3, 2, 1, 0, 1, 0], 3: [3, 3, 2, 1, 0, 3, 3, 2, 1, 0], 4: [3, 3, 3, 2, 2, 2, 1, 1, 0, 0], 5: [2, 1, 0, 3, 2, 1, 0, 2, 1, 0], 6: [3, 3, 3, 3, 2, 2, 1, 1, 0, 3], 7: [3, 3, 2, 2, 2, 1, 1, 0, 0, 3], 8: [3, 3, 3, 3, 3, 3, 2, 1, 0, 3], 9: [2, 1, 0, 0, 3, 3, 2, 1, 0, 3], 10: [3, 2, 2, 1, 1, 1, 0, 0, 0, 3], 11: [3, 3, 3, 2, 2, 2, 2, 1, 0, 3], 12: [1, 0, 1, 0, 1, 3, 2, 1, 0, 2]}[o.prio]
            e(f"s_setprio {pat[t]}")
        if o.prio == 1 and t in (4, 9):
            e(f"s_cmp_eq_u32 s84, 0\ns_cbranch_scc1 L_pa{t}\ns_setprio 0\ns_branch L_pb{t}\nL_pa{t}:\ns_setprio {2 if t == 4 else 1}\nL_pb{t}:")
        cs = "s86" if t == 9 else f"s{SC+nk}"
        hs = "s85" if t == 9 else "s84"
        if nsp == 0:
            e(f"s_cmp_eq_u32 {cs}, 0\ns_cbranch_scc1 L_w{t}_0")
            for i in range(8):
                load(nk, i, nb + 4 * i, hs)
                if i < 6:
                    some(i, 6)
            e(f"s_cmp_gt_u32 {cs}, 320\ns_cbranch_scc1 L_xl{t}")
            e("s_waitcnt vmcnt(8) lgkmcnt(0)")
        else:
            e(f"s_cmp_le_u32 {cs}, 128\ns_cbranch_scc1 L_w{t}_0")
            for i in range(5):
                load(nk, 8 + i, nb + 4 * i, hs)
                some(i, 5)
            for i in range(5, 12):
                e(f"s_cmp_le_u32 {cs}, {16*(8+i)}\ns_cbranch_scc1 L_w{t}_{i}")
                load(nk, 8 + i, nb + 4 * i, hs)
            e(f"s_branch L_w{t}_12")
            for i in range(5, 12):
                e(f"L_w{t}_{i}:\ns_waitcnt vmcnt({i})")
            e(f"L_w{t}_12:\ns_waitcnt vmcnt(12) lgkmcnt(0)")
        e(f"L_go{t}:")
        swaps(cb); swaps(cb + 16)
        mm(k, AR[0], cb); mm(k, AR[1], cb + 16)
        if sp == 1:
            e(f"s_cmp_le_u32 s{SC+k}, 256\ns_cbranch_scc1 L_md{t}")
            swaps(cb + 32)
            e(f"s_cmp_gt_u32 s{SC+k}, 384\ns_nop 0")
            mm(k, AR[2], cb + 32)
            e(f"s_cbranch_scc1 L_more{t}")
            e(f"L_md{t}:")
        else:
            e(f"s_cmp_gt_u32 s{SC+k}, 320\ns_cbranch_scc1 L_xm{t}\nL_md{t}:")
        if o.tstamp:
            e(f"s_memrealtime s[76:77]\ns_mul_i32 s48, s14, 80\ns_lshr_b32 s49, s84, 8\ns_mul_i32 s49, s49, 40\ns_add_u32 s48, s48, s49\ns_add_u32 s48, s48, {LDS + 4*t}\nv_mov_b32 v17, s48\ns_waitcnt lgkmcnt(0)\nv_mov_b32 v18, s76\nds_write_b32 v17, v18")
    e("s_nop 8")
    flush(4)
    e("s_cmp_lg_u32 s84, 0\ns_cbranch_scc1 L_tdone")
    for k in range(5):
        e(f"s_add_u32 s{STB+k}, s{STB+k}, 256\ns_add_u32 s{SS+k}, s{SS+k}, 12")
    e("s_mov_b32 s84, 256\ns_mov_b32 s86, 0\ns_branch L_hloop")
    e("L_tdone:")
    if o.tail:
        e("s_waitcnt lgkmcnt(0)\ns_barrier")
    stamp(e, o, 9)
    if o.stamp:
        e("s_memtime s[76:77]\ns_waitcnt lgkmcnt(0)\ns_sub_u32 s99, s76, s98\ns_add_u32 s98, s72, 1")
    def adv_slow(lbl_round, lbl_done):
        e(f"s_cmp_eq_u32 s15, 0\ns_cbranch_scc1 {lbl_done}")
        e("s_add_u32 s61, s61, 1\ns_cmp_lt_u32 s61, 64\ns_cselect_b32 s48, 0, 16\ns_cselect_b32 s61, s61, 0\ns_add_u32 s60, s60, s48")
        e(f"s_cmp_ge_u32 s60, s64\ns_cbranch_scc1 {lbl_done}")
        e(f"s_waitcnt lgkmcnt(0)\ns_barrier\ns_branch {lbl_round}")
    adv_slow("L_slow_load", "L_gdone")
    e("L_gdone:")
    stamp_out(e, o)
    e("s_endpgm")
    for t in range(10):
        e(f"L_w{t}_0:")
        if o.lfirst:
            e("\n".join(others(t, "s")))
        e(f"s_waitcnt vmcnt(0) lgkmcnt(0)\ns_branch L_go{t}")
    for t in range(10):
        sp, k = divmod(t, 5)
        nsp, nk = divmod((t + 1) % 10, 5)
        if sp == 0:
            e(f"L_xa{t}:")
            aread(5, AR[2])
            e(f"s_branch L_na{t}")
            e(f"L_xm{t}:")
            swaps(BUF[t % 2] + 32)
            e("s_nop 1")
            mm(k, AR[2], BUF[t % 2] + 32)
            e(f"s_branch L_md{t}")
        if nsp == 0:
            e(f"L_xl{t}:")
            for i in range(4):
                load(nk, 20 + i, BUF[(t + 1) % 2] + 32 + 4 * i, "s85" if t == 9 else "s84")
            e(f"s_waitcnt vmcnt(12) lgkmcnt(0)\ns_branch L_go{t}")
    e.sec("cold")
    e("L_cold:")
    for t in range(5, 10):
        k = t - 5
        cb = BUF[t % 2]
        e(f"L_more{t}:")
        for i in range(24, 32):
            e(f"s_cmp_le_u32 s{SC+k}, {16*i}\ns_cbranch_scc1 L_mi{t}")
            load(k, i, cb + 4 * (i - 24), "s84")
        e(f"L_mi{t}:")
        for G in range(6, 8):
            e(f"s_cmp_le_u32 s{SC+k}, {64*G}\ns_cbranch_scc1 L_mx{t}")
            aread(G, AR[0])
            e("s_waitcnt vmcnt(0) lgkmcnt(0)")
            swaps(cb + 16 * (G - 6))
            e("s_nop 1")
            mm(k, AR[0], cb + 16 * (G - 6))
        e(f"L_mx{t}:\ns_branch L_md{t}")
    e("L_slow_load:")
    e("s_barrier")
    e("v_and_b32 v2, 15, v0\nv_lshrrev_b32 v3, 4, v1\nv_mov_b32 v23, 4\nv_mov_b32 v17, 512\nv_lshlrev_b32 v18, 2, v3\nv_lshl_add_u32 v18, v2, 4, v18")
    e("s_cmp_ge_u32 s14, 1\ns_cbranch_scc1 L_placed")
    e("s_lshl_b32 s48, s61, 2\nv_add_u32 v6, s48, v3")
    vrow(7, 6, 8)
    e("v_add_u32 v7, s75, v7")
    e("global_load_dword v8, v7, s[8:9] sc1")
    e(f"v_mul_u32_u24 v6, {REC_STRIDE}, v6\nv_add_u32 v10, s60, v2\nv_mov_b32 v25, {KEYLIM}")
    e("s_waitcnt vmcnt(0)")
    e("v_bfe_u32 v9, v8, 12, 12\nv_and_b32 v8, 0xfff, v8\nv_add_u32 v8, v8, v10\nv_mul_u32_u24 v8, 12, v8\nv_add_u32 v35, v8, v6")
    e("v_cmp_lt_u32 vcc, v10, v9\ns_and_b64 exec, exec, vcc")
    e("s_cbranch_execz L_placed")
    e("global_load_dwordx3 v[32:34], v35, s[8:9] sc1\ns_waitcnt vmcnt(0)")
    rank(32)
    e("s_waitcnt lgkmcnt(0)")
    place(32)
    e("s_branch L_placed")

    e.sec("aux")
    e("L_p89:")
    e("s_cmp_eq_u32 s14, 8\ns_cbranch_scc1 L_p8")
    e("v_mov_b32 v56, v58\nv_mov_b32 v57, v59\nv_mov_b32 v60, v62\nv_mov_b32 v61, v63")
    e("L_p8:")
    for i in range(2):
        e(f"v_lshl_or_b32 v{48+2*i}, v{56+i}, 12, v{60+i}\nv_or_b32 v{48+2*i}, s74, v{48+2*i}\nv_mov_b32 v{49+2*i}, s73")
    e("v_mov_b32 v28, s2")
    vrow(30, 28, 29)
    e(f"v_subrev_u32 v28, 8192, v68\nv_and_b32 v29, {128 // TS - 1}, v28\nv_sub_u32 v28, v28, v29\nv_mad_u32_u24 v28, v28, {TS}, v29")
    e(f"v_add_u32 v30, v30, v28\nv_add_u32 v30, {TAB_OFF}, v30")
    e("s_waitcnt vmcnt(0)")
    stamp(e, o, 5)
    e("s_barrier")
    e("global_store_dwordx4 v30, v[48:51], s[8:9] sc1")
    e("s_branch L_gemm")

    def init_cnt(vz):
        e(f"v_mul_u32_u24 v9, {2*KSTR}, v1\nv_add_u32 v8, {L_KEY + MID - 4}, v9\nv_add_u32 v10, {L_KEY + MID - 4 + KSTR}, v9\nv_add_u32 v11, {L_KEY + MID + KSTR}, v9\nv_add_u32 v9, {L_KEY + MID}, v9")
        e(f"v_cmp_gt_u32 vcc, 20, v1\nv_lshlrev_b32 {vz}, 4, v1\ns_nop 0")
        for r in range(8, 12):
            e(f"v_cndmask_b32 v{r}, 0, v{r}, vcc")
        e(f"ds_write_b128 {vz}, v[8:11]")
    e("L_helper:")
    zero_lists_all()
    common_consts()
    e("v_lshlrev_b32 v5, 4, v1")
    e("s_cmp_eq_u32 s14, 11\ns_cbranch_scc1 L_h11")
    e("s_waitcnt lgkmcnt(0)")
    if o.spf & 1:
        e("s_lshr_b32 s48, s2, 3\ns_mul_i32 s49, s48, 768\ns_lshl_b32 s48, s48, 9")
        e("s_add_u32 s32, s26, s48\ns_addc_u32 s33, s27, 0\ns_add_u32 s34, s28, s49\ns_addc_u32 s35, s29, 0")
        for i in range(4):
            e(f"s_load_dword s36, s[32:33], {128*i}")
        for i in range(6):
            e(f"s_load_dword s36, s[34:35], {128*i}")
        e("s_load_dword s36, s[24:25], 0")
    e("s_barrier")
    for _ in range(o.wpos - 1):
        e("s_barrier")
    if o.wsl:
        e(f"s_sleep {o.wsl}")
    for k in range(20):
        if k % 4 == 0:
            e(f"v_add_u32 v6, {1024*(k % 16)}, v5")
        e(f"global_load_dwordx4 v[{72+4*k}:{75+4*k}], v6, {'s[26:27]' if k < 16 else 's[28:29]'} offset:{1024*(k%4)}")
    e(f"v_add_u32 v7, {P_W}, v5")
    e("s_branch L_h2")
    e("L_h11:")
    init_cnt("v12")
    e("s_waitcnt lgkmcnt(0)")
    if o.spf & 2:
        for base, offs in (("s[8:9]", [30720 + REC_STRIDE * 68 * i for i in range(4)] + [TAB_OFF + 2048]), ("s[4:5]", [0, 2 << 20, 4 << 20]), ("s[10:11]", [0, 2 << 20, 4 << 20])):
            for off in offs:
                e(f"s_mov_b32 s37, {off}\ns_load_dword s36, {base}, s37")
    e("s_barrier")
    for _ in range(o.wpos - 1):
        e("s_barrier")
    if o.wsl:
        e(f"s_sleep {o.wsl}")
    for k in range(20):
        if k % 4 == 0:
            e(f"v_add_u32 v6, {4096 + 1024*k}, v5")
        e(f"global_load_dwordx4 v[{72+4*k}:{75+4*k}], v6, s[28:29] offset:{1024*(k%4)}")
    e(f"v_add_u32 v7, {P_W + 20480}, v5")
    e("L_h2:")
    e("v_min_u32 v6, 624, v5")
    e("global_load_dwordx4 v[152:155], v6, s[24:25]")
    CPF2 = "v_add_u32 v70, L_late-L_pc, v70\nv_min_u32 v70, L_cold-L_pc, v70\nglobal_load_dword v4, v70, s[46:47]"
    if o.cpf and o.cpf2 == 1:
        e(CPF2)
    def xph():
        e("s_lshl_b32 s48, s2, 1\ns_add_u32 s48, s48, s14\ns_sub_u32 s48, s48, 10\ns_mul_i32 s48, s48, 10240\nv_lshlrev_b32 v30, 7, v1")
        e("buffer_load_dword v31, v30, s[4:7], s48 offen\ns_add_u32 s48, s48, 8192\ns_mov_b64 exec, 0xffff\nbuffer_load_dword v31, v30, s[4:7], s48 offen\ns_mov_b64 exec, -1")
    if o.xpos == "A":
        xph()
    if o.wpos < 2:
        e("s_barrier")
    if o.wlate and o.wpos < 3:
        e("s_barrier")
    e(f"s_waitcnt vmcnt({1 if o.cpf2 == 1 else 0})")
    for k in range(20):
        e(f"ds_write_b128 v7, v[{72+4*k}:{75+4*k}] offset:{1024*k}")
    e(f"v_add_u32 v7, {P_WR}, v5\nds_write_b128 v7, v[152:155]")
    if not o.wlate:
        e("s_waitcnt lgkmcnt(0)\ns_barrier")
    if o.cpf and o.cpf2 == 2:
        e(CPF2)

    e("L_gemm:")
    e("s_sub_u32 s51, s14, 8")
    e("v_and_b32 v9, 7, v2")
    for c in range(4):
        e(f"v_add_u32 v8, {4*c}, v3\nv_xor_b32 v8, v8, v2\nv_lshlrev_b32 v8, 4, v8\nv_lshl_add_u32 v8, v2, 11, v8\nv_add_u32 v{16+c}, {L_T}, v8")
        e(f"v_add_u32 v8, {4*c}, v3\nv_xor_b32 v8, v8, v9\nv_lshlrev_b32 v8, 4, v8\nv_lshl_add_u32 v8, v9, 11, v8\nv_add_u32 v{20+c}, {L_T + 65536}, v8")
    e(f"v_mul_u32_u24 v5, 528, v2\nv_lshl_add_u32 v5, v3, 3, v5\ns_lshl_b32 s48, s51, 5\ns_add_u32 s48, s48, {L_KEY}\nv_add_u32 v5, s48, v5")
    e(f"v_lshrrev_b32 v6, 5, v1\nv_lshlrev_b32 v6, 4, v6\nv_lshl_add_u32 v6, v1, 4, v6\nv_add_u32 v6, {L_KEY}, v6")
    e("v_lshlrev_b32 v7, 4, v1")
    e("s_mov_b32 s40, s10\ns_mov_b32 s41, s11\ns_add_u32 s42, s12, s13\ns_lshl_b32 s42, s42, 9\ns_mov_b32 s43, 0x20000\ns_lshl_b32 s44, s12, 9")
    e("v_mov_b32 v14, 0\nv_mov_b32 v12, 1\ns_mov_b32 s45, 0xbfb8aa3b")
    e(f"s_lshl_b32 s48, s51, 5\ns_add_u32 s48, s48, {P_W}")
    e("v_lshrrev_b32 v28, 2, v2\nv_lshl_add_u32 v28, v3, 3, v28\nv_lshlrev_b32 v28, 7, v28\nv_and_b32 v29, 3, v2\nv_lshl_add_u32 v28, v29, 3, v28\nv_add_u32 v28, s48, v28")
    e(f"v_lshlrev_b32 v29, 4, v3\nv_add_u32 v29, {P_WR}, v29")
    if o.wlate:
        assert o.ackgate
        e("s_waitcnt vmcnt(0) lgkmcnt(0)\ns_barrier")
    for f in range(10):
        e(f"ds_read_b64_tr_b16 v[{VW+4*f}:{VW+1+4*f}], v28 offset:{4096*f}")
        e(f"ds_read_b64_tr_b16 v[{VW+2+4*f}:{VW+3+4*f}], v28 offset:{4096*f+512}")
        e(f"ds_read_b128 v[{VF+4*f}:{VF+3+4*f}], v29 offset:{64*f}")
    if o.ackgate and not o.wlate:
        e("s_waitcnt vmcnt(0)\ns_barrier")
    if o.xpos == "B":
        e("s_cmp_lt_u32 s14, 10\ns_cbranch_scc1 L_nxb")
        xph()
        e("L_nxb:")
    if o.pbar:
        e("s_barrier")
    def wscale():
        for i in range(48):
            e(f"v_mov_b32 v{VO+i}, 0")
        e("s_waitcnt lgkmcnt(0)")
        for f in range(10):
            for d in range(4):
                half(e, 24, VW + 4 * f + d, 0); half(e, 25, VW + 4 * f + d, 1)
                half(e, 26, VF + 4 * f + d, 0); half(e, 27, VF + 4 * f + d, 1)
                e("v_mul_f32 v24, v24, v26\nv_mul_f32 v25, v25, v27")
                e(f"v_cvt_pk_bf16_f32 v{VW+4*f+d}, v24, v25")
        for d in range(8):
            e(f"v_xor_b32 v{VW+40+d}, 0x80008000, v{VW+32+d}")
    if o.wscale == 0:
        wscale()
    else:
        e("s_mov_b32 s66, 1")
    e.sec("cold")
    e("L_gnext:")
    e("v_mov_b32 v8, 0\nv_mov_b32 v9, 0\nv_mov_b32 v10, 0\nv_mov_b32 v11, 0")
    e("s_lshl_b32 s48, s51, 10\nv_lshl_add_u32 v13, v1, 4, s48\nv_add_u32 v15, 0x8000, v13")
    for k in range(18):
        e(f"ds_write_b128 {'v13' if k < 8 else 'v15'}, v[8:11] offset:{1024 + 4096*k - (0 if k < 8 else 32768)}")
    e("s_cmp_lg_u32 s51, 0\ns_cbranch_scc1 L_gn2")
    init_cnt("v13")
    e("L_gn2:")
    e("s_waitcnt lgkmcnt(0)\ns_barrier\ns_branch L_gplaced")
    e.sec("aux")
    e("L_gplaced:")
    e(f"v_lshlrev_b32 v8, 3, v1\nv_mul_u32_u24 v9, {KSTR}, v1\nv_add_u32 v9, {L_KEY + MID}, v9")
    e("s_waitcnt lgkmcnt(0)\ns_barrier")
    check_overflow("L_m", "L_gnext")
    e("s_branch L_stages")
    e.sec("stages")
    e("L_stages:")
    if o.wscale:
        e("s_cmp_eq_u32 s66, 0\ns_cbranch_scc1 L_wdone")
        wscale()
        e("s_mov_b32 s66, 0\nL_wdone:")
    def xlate():
        e("s_lshl_b32 s48, s2, 2\ns_add_u32 s48, s48, s51\ns_mul_i32 s48, s48, 5120\ns_add_u32 s48, s48, 256")
        e("v_lshrrev_b32 v8, 1, v1\nv_lshlrev_b32 v8, 9, v8\nv_and_b32 v9, 1, v1\nv_lshl_add_u32 v8, v9, 7, v8")
        e("s_mov_b64 exec, 0xfffff\nbuffer_load_dword v4, v8, s[4:7], s48 offen\ns_mov_b64 exec, -1")
    if o.xlate == 1:
        xlate()
    e("s_or_b32 s48, s2, s51\ns_cmp_lg_u32 s48, 0\ns_cbranch_scc1 L_noepoch")
    e(f"v_mov_b32 v8, {EPOCH_OFF}\nv_mov_b32 v9, s73\ns_mov_b64 exec, 1\nglobal_store_dword v8, v9, s[8:9] sc1\ns_mov_b64 exec, -1")
    e("L_noepoch:")
    e("s_waitcnt vmcnt(0)")
    if o.gprio:
        e(f"s_setprio {o.gprio}")
    e("s_mov_b32 s67, 1\ns_cmp_eq_u32 s15, 0\ns_cbranch_scc1 L_lastknown")
    e("s_add_u32 s48, s60, 16\ns_cmp_ge_u32 s48, s64\ns_cselect_b32 s67, 1, 0\ns_cmp_eq_u32 s61, 63\ns_cselect_b32 s67, s67, 0")
    e("L_lastknown:")
    blocks = []
    for s in range(4):
        for t in range(4):
            if s == 0 and t == 0: ob, kind = 0, 0
            elif s == t: ob, kind = 0, 1
            elif t == 0: ob, kind = s, 2
            elif s == 0: ob, kind = t, 3
            else:
                j, k = s - 1, t - 1
                i = 3 - j - k
                sign = 1 if (i, j, k) in ((0, 1, 2), (1, 2, 0), (2, 0, 1)) else -1
                ob, kind = 1 + i, 4 if sign > 0 else 5
            blocks.append((s, t, ob, kind))
    NF = 8
    stages = [(h, tau) for h in range(2) for tau in ((0, 2, 1) if o.tord else (0, 1, 2))]
    def finish(tau):
        e(f"s_cmp_eq_u32 s67, 0\ns_cbranch_scc1 L_nofin_{tau}")
        e("s_nop 5")
        a = VO + 16 * tau
        for r in range(4):
            e(f"v_mul_f32 v{8+r}, s45, v{a+r}")
        for r in range(4):
            e(f"v_exp_f32 v{8+r}, v{8+r}")
        e(f"v_cvt_pk_bf16_f32 v24, v{a}, v{a+1}\nv_cvt_pk_bf16_f32 v25, v{a+2}, v{a+3}")
        e(f"ds_write_b64 v5, v[24:25] offset:{OST[tau]}")
        for r in range(4):
            e(f"v_add_f32 v{8+r}, 1.0, v{8+r}")
        for r in range(4):
            e(f"v_rcp_f32 v{8+r}, v{8+r}")
        e("s_nop 0")
        for ob in range(1, 4):
            for r in range(4):
                e(f"v_mul_f32 v{a+4*ob+r}, v{a+4*ob+r}, v{8+r}")
            e(f"v_cvt_pk_bf16_f32 v{24+2*ob}, v{a+4*ob}, v{a+4*ob+1}\nv_cvt_pk_bf16_f32 v{25+2*ob}, v{a+4*ob+2}, v{a+4*ob+3}")
            e(f"ds_write_b64 v5, v[{24+2*ob}:{25+2*ob}] offset:{OST[tau] + 128*ob}")
        e(f"s_mov_b64 exec, 1\nds_add_rtn_u32 v8, v14, v12 offset:{C_STORE + 4*tau}\ns_mov_b64 exec, -1")
        e(f"s_waitcnt lgkmcnt(0)\nv_readfirstlane_b32 s48, v8\ns_cmp_lg_u32 s48, 3\ns_cbranch_scc1 L_nofin_{tau}")
        nk = 8 if tau < 2 else 4
        for k in range(nk):
            e(f"ds_read_b128 v[{VF+4*k}:{VF+3+4*k}], v6 offset:{OST[tau] + 1056*k}")
        for k in range(nk):
            if tau == 0 and k % 4 == 0:
                e(f"s_add_u32 s48, s44, {1024*k}")
            e(f"s_waitcnt lgkmcnt({nk-1-k})")
            if tau == 0:
                e(f"buffer_store_dwordx4 v[{VF+4*k}:{VF+3+4*k}], v7, s[40:43], s48 offen offset:{1024*(k%4)} {o.ostore}")
            else:
                e(f"buffer_store_dwordx4 v[{VF+4*k}:{VF+3+4*k}], v{VF+32+k}, s[40:43], s44 offen {o.ostore}")
        e(f"L_nofin_{tau}:")
    def last_stage(h, tau):
        a = VO + 16 * tau
        e("v_lshrrev_b32 v8, 5, v1\ns_lshl_b32 s48, s51, 4\nv_lshl_add_u32 v8, v8, 2, s48\nv_and_b32 v9, 0x1f0, v7")
        e(f"ds_read2_b32 v[{VF+32}:{VF+33}], v8 offset0:{(C_PERM + 64*tau)//4} offset1:{(C_PERM + 64*tau)//4 + 2}")
        e("s_mul_i32 s48, s51, 2112\nv_add_u32 v13, s48, v6\ns_waitcnt lgkmcnt(0)")
        e(f"v_add_u32 v{VF+32}, v9, v{VF+32}\nv_add_u32 v{VF+33}, v9, v{VF+33}")
        e("s_barrier")
        stamp(e, o, 9)
        steps = sorted([(ob, s, t, kind, ks) for (s, t, ob, kind) in blocks if t // 2 == h for ks in range(2)])
        ops = []
        def fread(n):
            ob, s, t, kind, ks = steps[n]
            off = (tau % 2) * 32768 + s * 512 + h * 256
            e(f"ds_read_b128 v[{VF+4*(n%NF)}:{VF+3+4*(n%NF)}], v{16 + 2*(t%2) + ks + (4 if tau == 2 else 0)} offset:{off}")
            ops.append(n)
        def outblk(ob):
            src = a
            if ob:
                src = 28
                for r in range(4):
                    e(f"v_mul_f32 v{28+r}, v{a+4*ob+r}, v{8+r}")
            p = 24 + 2 * (ob % 2)
            e(f"v_cvt_pk_bf16_f32 v{p}, v{src}, v{src+1}\nv_cvt_pk_bf16_f32 v{p+1}, v{src+2}, v{src+3}")
            e(f"ds_write_b64 v5, v[{p}:{p+1}] offset:{OST[tau] + 128*ob}")
            ops.append(-1)
        for n in range(NF - 1):
            fread(n)
        for n in range(16):
            ob, s, t, kind, ks = steps[n]
            if n + NF - 1 < 16:
                fread(n + NF - 1)
            e(f"s_waitcnt lgkmcnt({len(ops) - 1 - ops.index(n)})")
            w = VW + 8 * kind + 4 * ks
            e(f"v_mfma_f32_16x16x32_bf16 v[{a+4*ob}:{a+4*ob+3}], v[{w}:{w+3}], v[{VF+4*(n%NF)}:{VF+3+4*(n%NF)}], v[{a+4*ob}:{a+4*ob+3}]")
            if n == 6:
                for r in range(4):
                    e(f"v_mul_f32 v{8+r}, s45, v{a+r}")
            if n in (7, 8):
                for r in range(2 * (n - 7), 2 * (n - 7) + 2):
                    e(f"v_exp_f32 v{8+r}, v{8+r}")
            if n == 9:
                for r in range(4):
                    e(f"v_add_f32 v{8+r}, 1.0, v{8+r}")
            if n in (10, 11):
                for r in range(2 * (n - 10), 2 * (n - 10) + 2):
                    e(f"v_rcp_f32 v{8+r}, v{8+r}")
            if n == 12:
                outblk(0)
            if n == 13:
                outblk(1)
        outblk(2)
        e("s_cmp_eq_u32 s67, 0")
        outblk(3)
        e(f"s_cbranch_scc1 L_nofin_{tau}")
        e("s_waitcnt lgkmcnt(0)\ns_barrier")
        for k in range(2):
            e(f"ds_read_b128 v[{VF+4*k}:{VF+3+4*k}], v13 offset:{OST[tau] + 1056*k}")
        for k in range(2):
            e(f"s_waitcnt lgkmcnt({1-k})\nbuffer_store_dwordx4 v[{VF+4*k}:{VF+3+4*k}], v{VF+32+k}, s[40:43], s44 offen {o.ostore2}")
        e(f"L_nofin_{tau}:")
    for (h, tau) in stages:
        if o.tail and (h, tau) == stages[-1]:
            assert tau == 1
            last_stage(h, tau)
            continue
        if (o.exp & 8) and (h, tau) != stages[-1]:
            continue
        if h == 1 and tau > 0:
            nk = 8 if tau < 2 else 4
            e("v_lshrrev_b32 v8, 5, v1\nv_lshlrev_b32 v8, 2, v8\nv_and_b32 v9, 0x1f0, v7")
            for k in range(nk):
                e(f"ds_read_b32 v{VF+32+k}, v8 offset:{C_PERM + 64*tau + 8*k}")
            e("s_waitcnt lgkmcnt(0)")
            for k in range(nk):
                e(f"v_add_u32 v{VF+32+k}, v9, v{VF+32+k}")
        e("s_mov_b32 s72, 0")
        e(f"L_poll_{h}_{tau}:")
        e(f"ds_read_b32 v8, v14 offset:{C_STAGE + 4*(3*h+tau)}\ns_waitcnt lgkmcnt(0)\nv_readfirstlane_b32 s48, v8")
        e(f"s_cmp_ge_u32 s48, {16 if tau < 2 else 8}\ns_cbranch_scc1 L_go_{h}_{tau}")
        e(f"s_sleep {1 if (h, tau) == stages[-1] else o.psleep}\ns_add_u32 s72, s72, 1\ns_cmp_lt_u32 s72, 0x40000\ns_cbranch_scc1 L_poll_{h}_{tau}\ns_endpgm")
        e(f"L_go_{h}_{tau}:")
        if (h, tau) == stages[-1]:
            stamp(e, o, 9)
        steps = [(s, t, ob, kind, ks) for (s, t, ob, kind) in blocks if t // 2 == h for ks in range(2)]
        def fread(n):
            s, t, ob, kind, ks = steps[n]
            off = (tau % 2) * 32768 + s * 512 + h * 256
            e(f"ds_read_b128 v[{VF+4*(n%NF)}:{VF+3+4*(n%NF)}], v{16 + 2*(t%2) + ks + (4 if tau == 2 else 0)} offset:{off}")
        for n in range(NF - 1):
            fread(n)
        for n in range(len(steps)):
            s, t, ob, kind, ks = steps[n]
            if n + NF - 1 < len(steps):
                fread(n + NF - 1)
            e(f"s_waitcnt lgkmcnt({min(NF - 1, len(steps) - 1 - n)})")
            acc = VO + 16 * tau + 4 * ob
            w = VW + 8 * kind + 4 * ks
            e(f"v_mfma_f32_16x16x32_bf16 v[{acc}:{acc+3}], v[{w}:{w+3}], v[{VF+4*(n%NF)}:{VF+3+4*(n%NF)}], v[{acc}:{acc+3}]")
        if o.xlate and h == 0 and (h, tau) == stages[o.xlate - 2]:
            xlate()
        if h == 1:
            finish(tau)
    adv_slow("L_gnext", "L_final")
    e("L_final:")
    if o.tstamp:
        e(f"s_mov_b64 exec, -1\nv_lshlrev_b32 v8, 4, v1\nv_add_u32 v9, {LDS}, v8\nds_read_b128 v[24:27], v9")
        e(f"s_lshl_b32 s48, s2, 10\ns_add_u32 s48, s48, {STAMP_OFF + (2 << 20)}\nv_add_u32 v8, s48, v8\ns_waitcnt lgkmcnt(0)\nglobal_store_dwordx4 v8, v[24:27], s[8:9]")
    if o.stamp:
        e("s_waitcnt vmcnt(0)")
        stamp(e, o, 11)
        stamp_out(e, o)
    e("L_end:\ns_endpgm")

def generate(o):
    e = Asm()
    K = NAME + "_kernel"
    lds = LDS + (1024 if o.tstamp else 0)
    head = HEADER + (f"; @launch kernel={K} grid=(256,1,1) block=(768,1,1) lds={lds}\n" if o.aslist else f"; @launch grid=(256,1,1) block=(768,1,1) lds={lds}\n")
    e(f'.amdgcn_target "amdgcn-amd-amdhsa--gfx950"\n.text\n.globl {K}')
    gen(e, o)
    return head + e.text(['head', 'aux', 'loop', 'stages', 'cold']) + KD.format(name=K, vgpr=168, sgpr=102, accum=168)

if __name__ == "__main__":
    kw = {}
    out = f"cdna_kernels/{NAME}.s"
    for a in sys.argv[1:]:
        k, v = a.split("=")
        if k == "out":
            out = v
        else:
            kw[k] = {"True": True, "False": False}.get(v, int(v) if v.lstrip("-").isdigit() else v)
    open(out, "w").write(generate(Opt(**kw)))
    print("wrote", out)
```

```python
import sys
from gen3 import KD, NAME, HEADER, stamp, stamp_init, stamp_out, half, STAMP_OFF

REC_STRIDE = 30848
TAB_STRIDE = 2176
TAB_OFF = 8 << 20
EPOCH_OFF = 10 << 20
CHK_OFF = 9 << 20
CHK_ROW = 2048 + 128
FLAG_OFF = CHK_OFF + (1 << 19)
assert 256 * REC_STRIDE <= TAB_OFF

class Asm:
    def __init__(self):
        self.s = {}
        self.sec("head")
    def sec(self, name):
        self.l = self.s.setdefault(name, [])
    def __call__(self, s):
        for x in s.split("\n"):
            x = x.strip()
            if x:
                self.l.append(x if x.endswith(":") and not x.startswith(";") else "    " + x)
    def text(self, order):
        assert sorted(order) == sorted(self.s), (order, list(self.s))
        return "\n".join(l for n in order for l in self.s[n]) + "\n"

class Opt:
    stamp = False
    tstamp = False
    nt = False
    psleep = 4
    ostore = "sc1"
    aslist = False
    cpf = 1
    tsleep = 1
    tsleep0 = 0
    srcpos = 1
    pbar = 0
    bal = 1
    ackgate = 0
    forcefail = 0
    tord = 1
    tail = 1
    kord = '432'
    wscale = 1
    cpf2 = 0
    wlate = 0
    dpf = 8
    wpf = 0
    spf = 0
    scpf = 0
    w1new = 1
    exp = 0
    po = 'p3222111002'
    py = 'p3322211103'
    trim = 1
    wpos = 1
    wsl = 0
    fast = 0
    hsp = 0
    tail2 = 1
    eplate = 0
    ppos = 3
    wfirst = 0
    retry = 1
    xat = 7
    xold = 0
    zmid = 96
    halves = 1
    hlate = 1
    pre = 1
    adpp = 0
    sx = 0
    sxpos = 1
    n1 = 0
    n2 = 10
    n3 = 5
    n3b = 0
    p0 = 0
    p1 = 0
    zlate = 0
    stag = 0
    stagbit = 7
    nodup = 1
    tshare = 2
    xlate = 7
    ostore2 = 'sc1'
    lfirst = 0
    xpf = 0
    xpre = 1
    xpos = 'C2'
    xl = 16
    pmask = 1
    nmap = 0
    prio = 7
    gprio = 3
    split = 5000
    first = 32
    def __init__(self, **kw):
        for k, v in kw.items():
            assert hasattr(self, k), k
            setattr(self, k, v)

CL = 68
NSL = 152
KSTR = 4 * NSL
MID = 4 * CL
L_CNT = 0
C_STAGE, C_STORE, C_MAX, C_TASK, C_FLAG = 320, 352, 368, 372, 512
L_KEY = 1024
KEYLIM = L_KEY + 40 * KSTR
L_COEF = 25600
COFF = L_COEF - 2 * L_KEY
L_T = 74496
assert 2 * KEYLIM + COFF + 8 <= L_T and L_T % 256 == 0
P_HIST = 75776
P_BASES = P_HIST + 3072
P_STAGE = P_BASES + 10240
P_W = P_STAGE + 30720
P_WR = P_W + 40960
LDS = P_WR + 1024
assert LDS >= L_T + 40 * 2048 and LDS <= 163840
OST = [L_COEF - L_KEY, L_COEF - L_KEY + 8448, 0]
C_PERM = C_FLAG
NLC = 12
NGC = NLC // 4
VB, VA, VACC = 72, 48, 24
VW, VO, VF = 32, 80, 128
VC0, VC1 = VB + 32, VB + 80

def gen(e, o):
    HO = 128 if o.hsp else 256
    hof = (lambda t: t % 2) if o.hsp else (lambda t: t // 2)
    sub = (lambda t: t // 2) if o.hsp else (lambda t: t % 2)
    TS = o.tshare
    TROW = 2048 * TS + 128
    def vrow(dst, p, tmp):
        if TS == 1:
            e(f"v_mul_u32_u24 v{dst}, {TAB_STRIDE}, v{p}")
        else:
            lg = TS.bit_length() - 1
            e(f"v_lshrrev_b32 v{tmp}, {5 + lg}, v{p}\nv_lshlrev_b32 v{tmp}, 5, v{tmp}\nv_and_or_b32 v{tmp}, v{p}, 31, v{tmp}\nv_mul_u32_u24 v{tmp}, {TROW}, v{tmp}")
            e(f"v_bfe_u32 v{dst}, v{p}, 5, {lg}\nv_lshl_add_u32 v{dst}, v{dst}, {7 - lg}, v{tmp}")
    def crow(dst, p, tmp):
        e(f"v_lshrrev_b32 v{tmp}, 6, v{p}\nv_lshlrev_b32 v{tmp}, 5, v{tmp}\nv_and_or_b32 v{tmp}, v{p}, 31, v{tmp}\nv_mul_u32_u24 v{tmp}, {CHK_ROW}, v{tmp}")
        e(f"v_bfe_u32 v{dst}, v{p}, 5, 1\nv_lshl_add_u32 v{dst}, v{dst}, 6, v{tmp}")
    nt = " nt" if o.nt else ""
    K = NAME + "_kernel"
    e(f".p2align 8\n.type {K},@function\n{K}:")
    if o.fast:
        n = 192 // o.dpf
        e("s_load_dwordx16 s[16:31], s[0:1], 8")
        e("s_cmpk_ge_u32 s2, 256\ns_cbranch_scc1 L_end")
        stamp_init(e, o)
        e("s_getpc_b64 s[46:47]\nL_pc:")
        e(f"s_bfe_u32 s48, s2, {hex(((o.dpf.bit_length() - 1) << 16) | 3)}\ns_mulk_i32 s48, {n * 128}\nv_lshl_add_u32 v70, v0, 7, s48\nv_min_u32 v70, L_cold-L_pc, v70")
        e(f"v_cmp_gt_u32 vcc, {n}, v0\ns_and_saveexec_b64 s[44:45], vcc\ns_cbranch_execz L_pfd")
        e("global_load_dword v71, v70, s[46:47]")
        e("L_pfd:\ns_mov_b64 exec, -1")
        e("v_min_u32 v5, 624, v0\ns_mul_i32 s48, s2, 625\nv_add_lshl_u32 v6, v5, s48, 4")
        HZ = f"v_lshlrev_b32 v26, 2, v0\nv_add_u32 v26, {P_HIST}, v26\nv_mov_b32 v64, 0\nds_write_b32 v26, v64"
        PT = "s_load_dwordx2 s[8:9], s[0:1], 88\ns_load_dwordx2 s[4:5], s[0:1], 0\ns_load_dwordx2 s[10:11], s[0:1], 72"
        if o.fast == 2:
            e(PT + "\n" + HZ)
        if o.fast == 3:
            e(HZ)
        e("s_waitcnt lgkmcnt(0)")
        e(f"global_load_dwordx4 v[8:11], v6, s[22:23]{nt}")
        if o.fast == 1:
            e(PT + "\n" + HZ)
        if o.fast == 3:
            e(PT)
        e("v_lshrrev_b32 v4, 6, v0\ns_nop 0")
        e("v_readfirstlane_b32 s14, v4\nv_and_b32 v1, 63, v0")
        e("v_lshrrev_b32 v7, 1, v6\nv_add_u32 v5, v6, v7")
        e("s_cmp_ge_u32 s14, 10")
        if o.fast == 1:
            e("s_waitcnt lgkmcnt(0)")
        e("s_barrier\ns_cbranch_scc1 L_helper")
    else:
        e("s_cmp_ge_u32 s2, 256\ns_cbranch_scc1 L_end")
        stamp_init(e, o)
        e("s_load_dwordx8 s[16:23], s[0:1], 8")
        e("s_load_dwordx2 s[8:9], s[0:1], 88")
        e("s_load_dwordx2 s[4:5], s[0:1], 0")
        e("s_load_dwordx4 s[24:27], s[0:1], 40")
        e("s_load_dwordx2 s[28:29], s[0:1], 56")
        e("s_load_dwordx2 s[10:11], s[0:1], 72")
        e("v_lshrrev_b32 v4, 6, v0\nv_and_b32 v1, 63, v0")
        e("v_min_u32 v5, 624, v0")
        e("v_readfirstlane_b32 s14, v4")
        e("s_mul_i32 s48, s2, 625\nv_add_u32 v5, s48, v5")
        e("v_lshlrev_b32 v6, 4, v5")
        e(f"v_lshlrev_b32 v26, 2, v0\nv_add_u32 v26, {P_HIST}, v26\nv_mov_b32 v64, 0")
        e("ds_write_b32 v26, v64")
        e("s_cmp_lt_u32 s14, 10\ns_cbranch_scc1 L_prod")
        if o.scpf:
            n = 160 // (2 * o.scpf)
            e("s_getpc_b64 s[46:47]\nL_pc:")
            e(f"s_lshr_b32 s48, s2, 2\ns_and_b32 s48, s48, {2 * o.scpf - 2}\ns_add_u32 s48, s48, s14\ns_sub_u32 s48, s48, 10\ns_mul_i32 s48, s48, {n * 128}")
            e("s_add_u32 s46, s46, s48\ns_addc_u32 s47, s47, 0\ns_waitcnt lgkmcnt(0)")
            for i in range(n):
                e(f"s_load_dword s36, s[46:47], {128*i}")
            e("s_barrier\ns_branch L_helper")
        elif o.dpf:
            n = 192 // o.dpf
            e("s_getpc_b64 s[46:47]\nL_pc:")
            e(f"s_lshr_b32 s48, s2, 3\ns_and_b32 s48, s48, {o.dpf - 1}\ns_mul_i32 s49, s48, {n * 128}\nv_lshl_add_u32 v70, v1, 7, s49")
            e(f"s_mov_b64 exec, {hex((1 << n) - 1)}" if n <= 32 else f"s_mov_b32 exec_hi, {hex((1 << (n - 32)) - 1)}")
            e("s_cmp_eq_u32 s14, 11\ns_cbranch_scc1 L_wpf")
            e("v_min_u32 v70, L_cold-L_pc, v70\nglobal_load_dword v71, v70, s[46:47]\ns_branch L_pfd")
            e("L_wpf:")
            if o.wpf:
                e("v_min_u32 v69, 16380, v70\ns_waitcnt lgkmcnt(0)\nglobal_load_dword v71, v70, s[28:29]\nglobal_load_dword v71, v69, s[26:27]")
            e("L_pfd:\ns_mov_b64 exec, -1")
        elif o.cpf:
            e("s_getpc_b64 s[46:47]\nL_pc:")
            e("v_subrev_u32 v70, 640, v0\nv_lshlrev_b32 v70, 7, v70\nv_min_u32 v69, " + ("L_late" if o.cpf2 else "L_cold") + "-L_pc, v70")
            e("global_load_dword v71, v69, s[46:47]")
        e("s_waitcnt lgkmcnt(0)\ns_barrier")
        e("s_branch L_helper\nL_prod:")
        e("s_waitcnt lgkmcnt(0)")
        e(f"global_load_dwordx4 v[8:11], v6, s[22:23]{nt}")
        if not o.eplate:
            e(f"s_add_u32 s30, s8, {EPOCH_OFF}\ns_addc_u32 s31, s9, 0\ns_load_dword s73, s[30:31], 0")
        e("v_lshlrev_b32 v7, 3, v5\nv_mul_u32_u24 v5, 24, v5")
        if o.srcpos != 1:
            e(f"global_load_dwordx4 v[12:15], v6, s[20:21]{nt}")
        if o.srcpos != 2:
            e("s_barrier")
    def payload(a):
        if o.srcpos == 1:
            e(f"global_load_dwordx4 v[12:15], v6, s[20:21]{nt}")
        e(f"global_load_dwordx2 v[16:17], {a}, s[18:19]{nt}")
        e(f"global_load_dwordx4 v[20:23], v5, s[16:17]{nt}")
        e(f"global_load_dwordx2 v[24:25], v5, s[16:17] offset:16{nt}")
    if o.stag:
        e(f"v_mov_b32 v18, v7\ns_bitcmp1_b32 s2, {o.stagbit}\ns_cbranch_scc1 L_st1")
    payload("v7")
    if o.stag:
        e("L_st1:")
    if o.srcpos == 2:
        e("s_barrier")
    if o.fast and not o.eplate:
        e(f"s_waitcnt lgkmcnt(0)\ns_add_u32 s30, s8, {EPOCH_OFF}\ns_addc_u32 s31, s9, 0\ns_load_dword s73, s[30:31], 0")
    def common_consts():
        e("v_and_b32 v2, 15, v0\nv_lshrrev_b32 v3, 4, v1")
        e("s_and_b32 s3, s2, 7\ns_lshl_b32 s3, s3, 5\ns_lshr_b32 s12, s2, 3\ns_add_u32 s3, s3, s12")
        e("s_mov_b32 s6, 5120000\ns_mov_b32 s7, 0x20000")
        e("s_mul_i32 s12, s3, 625\ns_add_u32 s13, s12, 640\ns_add_u32 s12, s12, 15\ns_lshr_b32 s12, s12, 4\ns_lshr_b32 s13, s13, 4\ns_sub_u32 s13, s13, s12")
        e("s_mov_b32 s15, 0\ns_mov_b32 s60, 0\ns_mov_b32 s61, 0")
        e(f"s_lshr_b32 s75, s3, 2\ns_lshl_b32 s75, s75, 4\ns_and_b32 s58, s3, 1\ns_lshl_b32 s58, s58, 3\ns_add_u32 s75, s75, s58")
        e(f"s_and_b32 s58, s3, 2\ns_lshl_b32 s58, s58, 9\ns_add_u32 s75, s75, s58")
        if o.tshare > 1:
            PC = 128 // o.tshare
            e(f"s_and_b32 s58, s75, {PC - 1}\ns_sub_u32 s75, s75, s58\ns_mul_i32 s75, s75, {o.tshare}\ns_add_u32 s75, s75, s58")
        e(f"s_add_u32 s75, s75, {TAB_OFF}")
    def zero_lists_all():
        e("v_mov_b32 v65, 0\nv_mov_b32 v66, 0\nv_mov_b32 v67, 0\nv_lshlrev_b32 v68, 4, v0")
        for k in range(6):
            e(f"ds_write_b128 v68, v[64:67] offset:{1024 + 12288*k}")
    zero_lists_all()
    common_consts()
    e("v_mov_b32 v7, 1\nv_lshlrev_b32 v27, 4, v1")
    e(f"s_lshl_b32 s48, s14, 10\ns_add_u32 s48, s48, {P_BASES - P_HIST}")
    e("v_mov_b32 v69, 625\nv_cmp_lt_u32 s[62:63], v0, v69")
    e(f"v_mov_b32 v69, {P_HIST}\ns_mov_b32 s50, 0x3fc")
    if o.stag:
        e(f"s_bitcmp0_b32 s2, {o.stagbit}\ns_cbranch_scc1 L_st2\ns_waitcnt vmcnt(0)")
        if o.stag == 1:
            payload("v18")
        e("L_st2:")
    e("s_waitcnt vmcnt(4)")
    if not (o.exp & 16):
        stamp(e, o, 1)
    for i in range(4):
        e(f"v_mul_u32_u24 v{28+i}, 214749, v{8+i}")
    e("s_mov_b64 exec, s[62:63]")
    for i in range(4):
        e(f"v_lshrrev_b32 v{28+i}, 21, v{28+i}\nv_and_or_b32 v{28+i}, v{28+i}, s50, v69")
        e(f"ds_add_rtn_u32 v{32+i}, v{28+i}, v7")
    e("s_mov_b64 exec, -1")
    e("v_add_u32 v26, v27, v69")
    e("s_waitcnt lgkmcnt(0)\ns_barrier")
    if o.stag == 2:
        e(f"s_bitcmp0_b32 s2, {o.stagbit}\ns_cbranch_scc1 L_st3")
        payload("v18")
        e("L_st3:")
    e("ds_read_b128 v[56:59], v26")
    def tag():
        e("s_add_u32 s73, s73, 0x9e3779b1\ns_lshl_b32 s74, s73, 24")
    if not o.eplate:
        tag()
    e(f"s_mul_i32 s49, s2, {REC_STRIDE}\ns_lshl_b32 s51, s73, 31")
    stamp(e, o, 2)
    e("s_waitcnt lgkmcnt(0)")
    def scan():
        e("v_add_u32 v37, v56, v57\nv_add_u32 v38, v58, v59\nv_add_u32 v36, v37, v38")
        e("v_mov_b32 v39, v36\ns_nop 1")
        for sh in (1, 2, 4, 8):
            e(f"v_add_u32_dpp v39, v39, v39 row_shr:{sh} row_mask:0xf bank_mask:0xf\ns_nop 1")
        e("v_add_u32_dpp v39, v39, v39 row_bcast:15 row_mask:0xa bank_mask:0xf\ns_nop 1")
        e("v_add_u32_dpp v39, v39, v39 row_bcast:31 row_mask:0xc bank_mask:0xf")
        e("v_sub_u32 v60, v39, v36")
        e("v_add_u32 v61, v60, v56\nv_add_u32 v62, v60, v37\nv_add_u32 v63, v62, v58")
    scan()
    e("v_add_u32 v36, s48, v26")
    e("ds_write_b128 v36, v[60:63]")
    e("s_mov_b64 exec, s[62:63]")
    for i in range(4):
        e(f"v_add_u32 v{36+i}, s48, v{28+i}")
    for i in range(4):
        e(f"ds_read_b32 v{36+i}, v{36+i}")
    e(f"v_mov_b32 v69, {P_STAGE}")
    e("s_waitcnt lgkmcnt(0)")
    for i in range(4):
        e(f"v_add_u32 v{32+i}, v{32+i}, v{36+i}\nv_mad_u32_u24 v{32+i}, v{32+i}, 12, v69")
    if o.ppos == 2:
        e("v_and_b32 v53, 7, v2\nv_lshl_add_u32 v53, v53, 2, v3\nv_lshl_add_u32 v53, v53, 3, s14")
        vrow(54, 53, 55)
        e("v_add_u32 v54, s75, v54")
    e("s_waitcnt vmcnt(3)")
    for i in range(4):
        e(f"v_cmp_le_u32 vcc, {o.split}, v{12+i}\nv_lshl_or_b32 v{48+i}, v{8+i}, 17, v{12+i}\nv_or_b32 v{48+i}, s51, v{48+i}\nv_or_b32 v52, 0x10000, v{48+i}\nv_cndmask_b32 v{48+i}, v{48+i}, v52, vcc")
        e(f"ds_write_b32 v{32+i}, v{48+i} offset:8")
    e("s_waitcnt vmcnt(0)")
    stamp(e, o, 3)
    for i in range(4):
        half(e, 36, 16 + i // 2, i % 2)
        for j in range(3):
            n = 3 * i + j
            half(e, 37 + j, 20 + n // 2, n % 2)
        for j in range(3):
            e(f"v_mul_f32 v{37+j}, v36, v{37+j}")
        e(f"v_cvt_pk_bf16_f32 v{40+2*i}, v36, v37\nv_cvt_pk_bf16_f32 v{41+2*i}, v38, v39")
        e(f"ds_write2_b32 v{32+i}, v{40+2*i}, v{41+2*i} offset0:0 offset1:1")
        e(f"v_alignbit_b32 v{12+i}, v{41+2*i}, v{48+i}, 31\nv_bitop3_b32 v52, v{48+i}, v{41+2*i}, 1 bitop3:0xbe\nv_xad_u32 v{12+i}, v{12+i}, v{40+2*i}, v{48+i}\nv_mul_lo_u32 v{12+i}, v{12+i}, v52\nds_add_u32 v{28+i}, v{12+i} offset:1024")
    e("s_mov_b64 exec, -1")
    e(f"v_add_u32 v5, {P_STAGE}, v68\nv_add_u32 v4, s49, v68\nv_add_u32 v6, 10240, v4\nv_add_u32 v7, 20480, v4")
    e("s_cmp_lt_u32 s14, 2\ns_cbranch_scc1 L_pub")
    e.sec("aux")
    e("L_pub:\ns_cmp_eq_u32 s14, 0\ns_cbranch_scc1 L_pub0")
    e("v_mov_b32 v56, v58\nv_mov_b32 v57, v59\nv_mov_b32 v60, v62\nv_mov_b32 v61, v63\nv_add_u32 v26, 8, v26")
    e("L_pub0:")
    for i in range(2):
        e(f"v_lshl_or_b32 v{16+2*i}, v{56+i}, 12, v{60+i}\nv_or_b32 v{16+2*i}, s74, v{16+2*i}")
    e("v_mov_b32 v20, s2")
    vrow(22, 20, 21)
    e(f"v_and_b32 v21, {128 // TS - 1}, v68\nv_sub_u32 v20, v68, v21\nv_mad_u32_u24 v20, v20, {TS}, v21")
    e(f"v_add_u32 v22, v22, v20\nv_add_u32 v22, {TAB_OFF}, v22")
    RD = "ds_read_b128 v[32:35], v5\nds_read_b128 v[8:11], v5 offset:10240\nds_read_b128 v[12:15], v5 offset:20480"
    e("s_waitcnt lgkmcnt(0)\ns_barrier")
    e("ds_read_b64 v[20:21], v26 offset:1024\n" + RD + "\ns_waitcnt lgkmcnt(3)\nv_add_u32 v17, s73, v20\nv_add_u32 v19, s73, v21")
    e("global_store_dwordx4 v22, v[16:19], s[8:9] sc1\ns_branch L_pubd")
    e.sec("head")
    e("s_waitcnt lgkmcnt(0)\ns_barrier")
    stamp(e, o, 4)
    e(RD + "\nL_pubd:")
    if o.ppos == 2:
        e("s_cmp_ge_u32 s14, 8\ns_cbranch_scc1 L_np")
        e("s_mov_b32 exec_lo, 0x00ff00ff\ns_mov_b32 exec_hi, 0x00ff00ff\nglobal_load_dwordx2 v[66:67], v54, s[8:9] sc1\ns_mov_b64 exec, -1\nL_np:")
    e("s_waitcnt lgkmcnt(2)\nglobal_store_dwordx4 v4, v[32:35], s[8:9] sc1")
    e("s_waitcnt lgkmcnt(1)\nglobal_store_dwordx4 v6, v[8:11], s[8:9] sc1")
    if o.trim:
        e("v_cmp_gt_u32 vcc, 600, v0\ns_and_b64 exec, exec, vcc")
    e("s_waitcnt lgkmcnt(0)\nglobal_store_dwordx4 v7, v[12:15], s[8:9] sc1")
    if o.trim:
        e("s_mov_b64 exec, -1")
    e("s_cmp_ge_u32 s14, 8\ns_cbranch_scc1 L_p89")
    e("v_and_b32 v28, 7, v2\nv_lshl_add_u32 v28, v28, 2, v3\nv_lshl_add_u32 v28, v28, 3, s14")
    vrow(30, 28, 29)
    e("v_add_u32 v30, s75, v30")
    e(f"v_lshlrev_b32 v69, 7, v28\nv_add_u32 v69, {FLAG_OFF}, v69")
    if o.w1new:
        e(f"v_mul_u32_u24 v64, {REC_STRIDE}, v28\nv_lshrrev_b32 v65, 3, v2\nv_add_u32 v65, 16, v65\nv_mad_u32_u24 v64, v65, 12, v64")
    e(f"v_lshl_add_u32 v28, v3, 3, s14\nv_mul_u32_u24 v28, {REC_STRIDE}, v28\nv_mul_u32_u24 v29, 12, v2\nv_add_u32 v31, v28, v29")
    e(f"s_mov_b32 s68, s8\ns_mov_b32 s69, s9\ns_mov_b32 s70, {TAB_OFF}\ns_mov_b32 s71, 0x20000")
    for i in range(o.zmid, 96 - o.zlate):
        e(f"v_mov_b32 v{VB+i}, 0")
    e("v_add_u32 v26, 16, v2")
    if o.xpos[0] == "C" and o.xl:
        e("; speed only: addresses of x lines to touch ahead of the gather")
        NCW = 0 if (o.sx or o.p1 or o.n1) else 5 if o.xlate else 15
        e(f"s_lshl_b32 s48, s2, 3\ns_add_u32 s48, s48, s14\ns_mul_i32 s48, s48, {NCW}\nv_add_u32 v27, s48, v1")
        e(f"v_cmp_gt_u32 vcc, 10000, v27\nv_mov_b32 v28, {(HO - 2560000) & 0xffffffff}\nv_mov_b32 v29, 2560000\nv_cndmask_b32 v28, v28, v29, vcc")
        e("s_and_b32 s48, s2, 7\ns_mul_i32 s48, s48, 5\ns_sub_u32 s48, s48, 16\nv_add_u32 v29, s48, v1\nv_subrev_u32 v36, 40, v29\nv_min_u32 v29, v29, v36")
        e("s_and_b32 s48, s2, 0xf8\ns_add_u32 s48, s48, s14\ns_mul_i32 s48, s48, 40\nv_add_u32 v29, s48, v29")
        e("v_cmp_gt_u32 vcc, 16, v1\ns_nop 1\nv_cndmask_b32 v27, v29, v27, vcc\nv_cndmask_b32 v28, 0, v28, vcc")
        e(f"v_lshrrev_b32 v29, 1, v27\nv_lshl_add_u32 v28, v29, 9, v28\nv_and_b32 v27, 1, v27\nv_lshl_add_u32 v27, v27, {8 if o.hsp else 7}, v28")
        e(f"s_mov_b32 s48, {((((1 << o.xl) - 1) << 16) | ((1 << NCW) - 1)) & 0xffffffff}\ns_mov_b32 s49, {(((1 << o.xl) - 1) << 16) >> 32}\nv_mov_b32 v29, 0x40000000\nv_cndmask_b32 v27, v29, v27, s[48:49]")
    elif o.xpos[0] == "C":
        e("s_lshl_b32 s48, s2, 3\ns_add_u32 s48, s48, s14\ns_mul_i32 s48, s48, 2560\nv_lshl_add_u32 v27, v1, 7, s48")
        e("v_cmp_gt_u32 vcc, 20, v1\nv_mov_b32 v29, 0x40000000\ns_nop 0\nv_cndmask_b32 v27, v29, v27, vcc")
    e("v_and_b32 v20, 3, v2\nv_mul_u32_u24 v20, 0x5555, v20")
    e("v_lshl_add_u32 v21, v3, 5, v2")
    e("v_mov_b32 v22, 1\nv_mov_b32 v23, 4")
    e("v_lshlrev_b32 v16, 4, v2")
    if o.hsp:
        e("v_and_b32 v17, 8, v2\nv_lshl_add_u32 v16, v17, 4, v16")
    e("v_mov_b32 v17, 512")
    e("v_lshlrev_b32 v18, 2, v3\nv_lshl_add_u32 v18, v2, 4, v18")
    e("v_lshrrev_b32 v19, 1, v3\nv_lshlrev_b32 v19, 5, v19\nv_and_b32 v24, 1, v3\nv_lshl_add_u32 v19, v24, 4, v19")
    e(f"v_lshrrev_b32 v24, 2, v2\nv_lshl_add_u32 v19, v24, 1, v19\nv_add_u32 v19, {COFF}, v19")
    if o.adpp:
        e("v_and_b32 v24, 1, v2\nv_lshl_add_u32 v19, v24, 6, v19\nv_and_b32 v24, 2, v2\nv_lshl_add_u32 v19, v24, 2, v19")
    e(f"s_lshl_b32 s50, s12, 3\ns_sub_u32 s50, {L_CNT}, s50\ns_lshr_b32 s48, s51, 14\ns_sub_u32 s50, s50, s48")
    e(f"v_mov_b32 v24, 0x40000000\nv_mov_b32 v25, {KEYLIM}\ns_mov_b32 s59, {L_KEY}")
    if o.eplate:
        e("s_waitcnt lgkmcnt(0)")
        tag()
    HALF = "s_mov_b32 exec_lo, 0x00ff00ff\ns_mov_b32 exec_hi, 0x00ff00ff"
    POLL = "global_load_dwordx2 v[6:7], v30, s[8:9] sc1"
    e("s_mov_b32 s72, 0\ns_mov_b32 s66, 0\ns_mov_b32 s57, 0\ns_mov_b64 s[52:53], 0\nv_mov_b32 v7, s73")
    e("s_waitcnt vmcnt(0)")
    stamp(e, o, 5)
    if o.ppos == 3:
        e("s_barrier")
    e(HALF + "\n" + POLL)
    if o.zmid:
        e("s_mov_b64 exec, -1")
        for i in range(o.zmid):
            e(f"v_mov_b32 v{VB+i}, 0")
        e(HALF)
    if o.ppos == 1:
        e("s_barrier")
    e("L_tpoll:")
    e("s_waitcnt vmcnt(0)")
    e("v_and_b32 v4, 0xff000000, v6\nv_cmp_ne_u32 vcc, s74, v4\ns_cmp_eq_u64 vcc, 0\ns_cbranch_scc1 L_tready")
    e(f"s_sleep {o.tsleep}\ns_mov_b64 exec, vcc\n" + POLL)
    e("s_add_u32 s72, s72, 1\ns_cmp_lt_u32 s72, 0x80000\ns_cbranch_scc1 L_tpoll\ns_endpgm")
    e("L_tready:")
    e("s_mov_b64 exec, -1")
    e("v_mov_b32_dpp v6, v6 row_shr:8 row_mask:0xf bank_mask:0xc")
    e("v_and_b32 v5, 0xfff, v6\nv_bfe_u32 v4, v6, 12, 12\nv_mul_u32_u24 v5, 12, v5")
    def rank(r):
        e(f"v_bfe_u32 v15, v{r+2}, 16, 1\nv_mad_u32_u16 v{r+3}, v{r+2}, v23, s50 op_sel:[1,0,0,0]\nv_lshl_add_u32 v15, v15, 3, -4")
        e(f"ds_add_rtn_u32 v{r+3}, v{r+3}, v15")
    def place(r):
        e(f"v_med3_u32 v{r+3}, v{r+3}, s59, v25\nv_lshlrev_b32 v8, 1, v{r+3}")
        e(f"ds_write_b32 v{r+3}, v{r+2}")
        e(f"ds_write_b64 v8, v[{r}:{r+1}] offset:{COFF}")
    XP = "buffer_load_dword v167, v27, s[4:7], 0 offen"
    for i in range(96 - o.zlate, 96):
        e(f"v_mov_b32 v{VB+i}, 0")
    e("v_sub_u32 v14, v4, v65\nv_add_u32 v68, v5, v64\nv_mov_b32 v29, v31\ns_mov_b32 s51, 0")
    e("v_cmp_lt_u32 vcc, 32, v4\ns_cmp_lg_u64 vcc, 0\ns_cbranch_scc1 L_long")
    e("L_load:")
    stamp(e, o, 6)
    for r in range(8):
        e(f"v_cmp_lt_i32 s[{32+2*r}:{33+2*r}], {2*r}, v14\ns_and_b64 exec, exec, s[{32+2*r}:{33+2*r}]\ns_cbranch_scc0 L_x1")
        e(f"global_load_dwordx3 v[{VB+4*r}:{VB+2+4*r}], v68, s[8:9] offset:{24*r} sc1\ns_mov_b32 s51, {r+1}")
    e("L_x1:\ns_mov_b64 exec, -1")
    for i in range(8):
        e(f"v_mov_b32_dpp v9, v4 row_newbcast:{i} row_mask:0xf bank_mask:0xf")
        e(f"v_cmp_lt_u32 s[{16+2*i}:{17+2*i}], v2, v9")
        e(f"v_add_u32_dpp v{10+i%2}, v5, v29 row_newbcast:{i} row_mask:0xf bank_mask:0xf")
        e(f"v_add_u32 v29, {32*REC_STRIDE}, v29")
        e(f"v_cndmask_b32 v{10+i%2}, v24, v{10+i%2}, s[{16+2*i}:{17+2*i}]")
        e(f"buffer_load_dwordx3 v[{32+4*i}:{34+4*i}], v{10+i%2}, s[68:71], 0 offen sc1")
    def some(f, lo, hi):
        for i in range(lo, hi):
            e(f"s_mov_b64 exec, s[{16+2*i}:{17+2*i}]")
            f(32 + 4 * i)
    def extra(f, lbl):
        for r in range(8):
            e(f"s_cmp_le_u32 s51, {r}\ns_cbranch_scc1 {lbl}\ns_mov_b64 exec, s[{32+2*r}:{33+2*r}]")
            f(VB + 4 * r)
        e(f"{lbl}:")
    def hsh(r, acc=7):
        e(f"v_alignbit_b32 v6, v{r+1}, v{r+2}, 31\nv_bitop3_b32 v9, v{r+2}, v{r+1}, 1 bitop3:0xbe\nv_xad_u32 v6, v6, v{r}, v{r+2}\nv_mul_lo_u32 v6, v6, v9\nv_sub_u32 v{acc}, v{acc}, v6")
    AD = [12, 13, 22, 26, 28, 66, 67, 70]
    def prerank(i):
        r = 32 + 4 * i
        e(f"v_bfe_u32 v{AD[i]}, v{r+2}, 16, 1\nv_mad_u32_u16 v{r+3}, v{r+2}, v23, s50 op_sel:[1,0,0,0]\nv_lshl_add_u32 v{AD[i]}, v{AD[i]}, 3, -4")
    e("s_waitcnt vmcnt(8)")
    e("v_subrev_u32 v7, s73, v7")
    extra(hsh, "L_x4")
    e("s_mov_b64 exec, -1")
    def verify(acc, lbl, ff):
        for sh in (1, 2, 4, 8):
            e(f"v_add_u32_dpp v{acc}, v{acc}, v{acc} row_shr:{sh} row_mask:0xf bank_mask:0xf\ns_nop 1")
        e(f"v_add_u32_dpp v{acc}, v{acc}, v{acc} row_bcast:15 row_mask:0xa bank_mask:0xf\ns_nop 1")
        e(f"v_add_u32_dpp v{acc}, v{acc}, v{acc} row_bcast:31 row_mask:0xc bank_mask:0xf\ns_nop 0")
        e(f"v_readlane_b32 s48, v{acc}, 63")
        if o.forcefail & ff:
            e("s_or_b32 s48, s48, 1")
        e(f"s_andn2_b32 s48, s48, s66\ns_cbranch_scc1 {lbl}")
    radd = lambda r: e(f"ds_add_rtn_u32 v{r+3}, v{r+3}, v{AD[(r - 32) // 4]}")
    if o.halves:
        e("v_mov_b32 v71, 0\ns_mov_b32 exec_lo, 0x0f0f0f0f\ns_mov_b32 exec_hi, 0x0f0f0f0f\nv_swap_b32 v71, v7\ns_mov_b64 exec, -1")
        for q in range(4):
            e(f"s_andn2_b64 s[{16+2*q}:{17+2*q}], s[{16+2*q}:{17+2*q}], s[52:53]")
        for i in range(8):
            e(f"s_waitcnt vmcnt({7 - i + (1 if i > o.xat else 0)})")
            if i == 7:
                stamp(e, o, 7)
            if i == o.xat and o.xpos == "C2":
                if o.xold:
                    assert o.xat == 7
                    e("s_cmp_ge_u32 s14, 4\ns_cbranch_scc1 L_nxp\n" + XP)
                    e("v_add_u32 v10, 40960, v27\ns_mov_b64 exec, 0xffff\nv_add_u32 v10, 5120, v27\ns_mov_b64 exec, -1\n" + XP.replace("v27", "v10") + "\nL_nxp:")
                else:
                    e(XP)
            hsh(32 + 4 * i, 71 if i < 4 else 7)
            prerank(i)
            if i == 3:
                verify(71, "L_retry", 1)
                some(radd, 0, 4)
                e("s_mov_b64 exec, -1")
            if i == 4:
                e("s_waitcnt lgkmcnt(0)")
                some(place, 0, 4)
                e("s_mov_b64 exec, -1\ns_mov_b64 s[52:53], -1")
        verify(7, "L_retry", 2)
        some(radd, 4, 8)
        extra(rank, "L_x2")
        e("s_waitcnt lgkmcnt(0)")
        some(place, 4, 8)
        extra(place, "L_x3")
    else:
        for i in range(8):
            e(f"s_waitcnt vmcnt({7-i})")
            if i == 7:
                stamp(e, o, 7)
                if o.xpos == "C2":
                    e(XP)
            hsh(32 + 4 * i)
            if o.pre and i < 7:
                prerank(i)
        if o.pre:
            prerank(7)
        else:
            e("s_nop 1")
        for sh in (1, 2, 4, 8):
            e(f"v_add_u32_dpp v7, v7, v7 row_shr:{sh} row_mask:0xf bank_mask:0xf\ns_nop 1")
        e("v_add_u32_dpp v7, v7, v7 row_bcast:15 row_mask:0xa bank_mask:0xf\ns_nop 1")
        e("v_add_u32_dpp v7, v7, v7 row_bcast:31 row_mask:0xc bank_mask:0xf\ns_nop 0")
        e("v_readlane_b32 s48, v7, 63")
        if o.forcefail:
            e("s_or_b32 s48, s48, 1")
        e("s_andn2_b32 s48, s48, s66\ns_cbranch_scc1 L_retry")
        if o.pre:
            some(lambda r: e(f"ds_add_rtn_u32 v{r+3}, v{r+3}, v{AD[(r - 32) // 4]}"), 0, 8)
        else:
            some(rank, 0, 8)
        extra(rank, "L_x2")
        e("s_waitcnt lgkmcnt(0)")
        some(place, 0, 8)
        extra(place, "L_x3")
    e.sec("cold")
    e("L_cold:")
    e("L_retry:\ns_waitcnt vmcnt(0)")
    if o.stamp:
        e("s_add_u32 s72, s72, 100")
    e(f"s_add_u32 s57, s57, 1\ns_cmp_le_u32 s57, {o.retry}\ns_cbranch_scc1 L_again\ns_branch L_flagwait")
    e("L_long:\ns_cmp_eq_u32 s66, 0\ns_cbranch_scc1 L_flagwait")
    e(f"v_mov_b32 v9, 0\ns_mov_b64 exec, vcc\nds_max_u32 v9, v4 offset:{C_MAX}\ns_mov_b64 exec, -1\ns_branch L_load")
    e("L_flagwait:")
    if o.stamp:
        e("s_add_u32 s72, s72, 100")
    e("s_mov_b32 s58, 0\ns_mov_b32 exec_lo, 0x00ff00ff\ns_mov_b32 exec_hi, 0x00ff00ff")
    e("L_fw:\nglobal_load_dwordx2 v[12:13], v69, s[8:9] sc1\ns_waitcnt vmcnt(0)")
    e("v_not_b32 v13, v13\nv_cmp_ne_u32 vcc, s73, v12\nv_cmp_ne_u32 s[48:49], s73, v13\ns_or_b64 vcc, vcc, s[48:49]\ns_cbranch_scc0 L_fok")
    e("s_sleep 2\ns_mov_b64 exec, vcc\ns_add_u32 s58, s58, 1\ns_cmp_lt_u32 s58, 0x80000\ns_cbranch_scc1 L_fw\ns_endpgm")
    e("L_fok:\ns_mov_b32 s66, -1\nL_again:\ns_mov_b64 exec, -1\nv_mov_b32 v7, s73")
    for i in range(32):
        e(f"v_mov_b32 v{VB+i}, 0")
    e(HALF + "\n" + POLL + "\ns_branch L_tpoll")
    e.sec("head")
    if o.xpos == "C3":
        e("s_mov_b64 exec, -1\n" + XP)
    e("L_placed:")
    e("s_mov_b64 exec, -1")
    e(f"v_lshlrev_b32 v8, 3, v1\nv_mul_u32_u24 v9, {KSTR}, v1\nv_add_u32 v9, {L_KEY + MID}, v9")
    e("s_waitcnt lgkmcnt(0)\ns_barrier")
    stamp(e, o, 8)
    if o.stamp:
        e("s_memtime s[76:77]\ns_waitcnt lgkmcnt(0)\ns_mov_b32 s98, s76")
    def check_read():
        e(f"ds_read_b64 v[10:11], v8 offset:{L_CNT}\ns_waitcnt lgkmcnt(0)")
        e(f"v_readlane_b32 s65, v10, {C_MAX // 8}\nv_add_u32 v10, 4, v10\nv_sub_u32 v15, v11, v10")
    def check_test(lbl, lbl_restart):
        e(f"s_cmp_lg_u32 s15, 0\ns_cbranch_scc1 {lbl}_ok")
        e(f"v_sub_u32 v11, v11, v9\nv_sub_u32 v9, v9, v10\nv_max_u32 v9, v9, v11")
        e(f"v_cmp_lt_u32 vcc, {4*CL}, v9\nv_mov_b32 v9, 512\nv_cmp_lt_u32 s[48:49], v9, v15\ns_or_b64 vcc, vcc, s[48:49]")
        e("s_and_b32 vcc_hi, vcc_hi, 0xff\ns_or_b32 s48, vcc_lo, vcc_hi\ns_or_b32 s48, s48, s65")
        e(f"s_cmp_eq_u32 s48, 0\ns_cbranch_scc1 {lbl}_ok")
        e("s_mov_b32 s15, 1\ns_max_u32 s64, s65, 32\ns_min_u32 s64, s64, 2560")
        e(f"s_waitcnt vmcnt(0) lgkmcnt(0)\ns_barrier\ns_branch {lbl_restart}")
        e(f"{lbl}_ok:")
    def check_overflow(lbl, lbl_restart):
        check_read()
        check_test(lbl, lbl_restart)
    SC, SL, STB, SX, SS = 52, 79, 16, 21, 26
    NSTEP = 8 if o.nmap == 0 else 4
    KEYR = lambda k, i: 2 + 2 * k + i // 16
    AR = [12, 24, 28]
    ACC = lambda k: 32 + 8 * k
    BUF = [VB, VB + 48]
    def scale(r):
        e(f"v_mul_u32_u24_sdwa v{r}, v{r}, v17 dst_sel:DWORD dst_unused:UNUSED_PAD src0_sel:WORD_0 src1_sel:DWORD")
    def load(k, i, dst, hs, tmp=(17, 18)):
        e(f"v_add_u32_dpp v{tmp[i%2]}, v{KEYR(k, i)}, v16 row_newbcast:{i%16} row_mask:0xf bank_mask:0xf")
        e(f"buffer_load_dwordx4 v[{dst}:{dst+3}], v{tmp[i%2]}, s[4:7], {hs} offen")
    def expand(a):
        if o.adpp:
            for r in range(4):
                e(f"v_mov_b32_dpp v{a+r}, v{a+3} quad_perm:[{r},{r},{r},{r}] row_mask:0xf bank_mask:0xf")
    def aread(G, a):
        if o.adpp:
            e(f"ds_read_u16 v{a+3}, v22 offset:{128*G}")
            return
        for r in range(4):
            e(f"ds_read_u16 v{a+r}, v22 offset:{128*G + 64*(r%2) + 8*(r//2)}")
    def swaps(q):
        if o.exp & 2:
            return
        e(f"v_swap_b32 v{q+2}, v{q+8}\nv_swap_b32 v{q+3}, v{q+9}\nv_swap_b32 v{q+6}, v{q+12}\nv_swap_b32 v{q+7}, v{q+13}")
    def mm(k, a, q):
        if o.exp & 1:
            return
        e(f"v_smfmac_f32_16x16x64_bf16 v[{ACC(k)}:{ACC(k)+3}], v[{a}:{a+3}], v[{q}:{q+7}], v20")
        e(f"v_smfmac_f32_16x16x64_bf16 v[{ACC(k)+4}:{ACC(k)+7}], v[{a}:{a+3}], v[{q+8}:{q+15}], v20")
    def flush_l(k):
        a = ACC(k)
        l = [f"v_xor_b32 v23, s{SX+k}, v21", f"v_lshl_add_u32 v23, v23, 4, s{STB+k}"]
        l += [f"v_cvt_pk_bf16_f32 v{a+d}, v{a+2*d}, v{a+2*d+1}" for d in range(4)]
        l += [f"ds_write_b128 v23, v[{a}:{a+3}]", f"v_mov_b32 v{a+4}, s{SS+k}", f"s_mov_b64 exec, 1\nds_inc_u32 v{a+4}, v19\ns_mov_b64 exec, -1"]
        l += [f"v_mov_b32 v{a+(i+5)%8}, 0" for i in range(8)]
        return l
    def flush(k):
        e("\n".join(flush_l(k)))
    def aread_l(G, a):
        if o.exp & 4:
            return []
        return [f"ds_read_u16 v{a+r}, v22 offset:{128*G + 64*(r%2) + 8*(r//2)}" for r in range(4)]
    def others(t, sfx):
        sp, k = divmod(t, 5)
        if o.adpp:
            l = [f"v_add_u32 v22, s{SL+k}, v19"] + [f"ds_read_u16 v{a+3}, v22 offset:{128*G}" for G, a in zip((2 * sp, 2 * sp + 1, 4 if sp else 5), AR)]
            return l + (["s_nop 5"] + flush_l(k - 1) if t >= 6 else [])
        l = [f"v_add_u32 v22, s{SL+k}, v19"] + aread_l(2 * sp, AR[0]) + aread_l(2 * sp + 1, AR[1])
        l.append(f"s_cmp_le_u32 s{SC+k}, {256 if sp else 320}\ns_cbranch_scc1 L_na{t}{sfx}\n" + "\n".join(aread_l(4 if sp else 5, AR[2])) + f"\nL_na{t}{sfx}:"
                 if sp or sfx else f"s_cmp_gt_u32 s{SC+k}, 320\ns_cbranch_scc1 L_xa{t}\nL_na{t}:")
        if t >= 6:
            l += flush_l(k - 1)
        return l
    check_read()
    GRP = [0, 1, 4, 2, 3] if o.tord else [0, 1, 2, 3, 4]
    e("s_mov_b32 s57, s14\ns_add_u32 s58, s14, 8")
    for k in range(2):
        e(f"v_readlane_b32 s{SL+k}, v10, s{57+k}\nv_readlane_b32 s{SC+k}, v15, s{57+k}\ns_nop 0")
        e(f"v_add_u32 v{12+k}, s{SL+k}, v18")
        e(f"ds_read2st64_b32 v[{2+2*k}:{3+2*k}], v{12+k} offset0:0 offset1:1")
    check_test("L_g", "L_slow_load")
    e("s_waitcnt lgkmcnt(1)")
    scale(2); scale(3)
    e(f"s_mov_b32 s84, 0\ns_mov_b32 s85, {HO}")
    if o.prio:
        e("s_setprio 3")
    for i in range(8):
        load(0, i, BUF[0] + 4 * i, "0", tmp=(13, 14))
    e(f"s_cmp_le_u32 s{SC}, 320\ns_cbranch_scc1 L_nx0")
    for i in range(4):
        load(0, 20 + i, BUF[0] + 32 + 4 * i, "0", tmp=(13, 14))
    e("L_nx0:")
    if o.bal:
        e("; nodes 16..39 go to the waves by size so that the totals match (fixed order when working in rounds)")
        e("s_cmp_eq_u32 s15, 0\ns_cselect_b32 s48, -1, 0\nv_and_b32 v27, s48, v15\nv_lshl_or_b32 v24, v27, 6, v1\nv_mov_b32 v25, 0")
        e("v_add_u32_dpp v26, v27, v27 row_shl:8 row_mask:0xf bank_mask:0xf")
        for j in range(24):
            e(f"v_readlane_b32 s{16+j}, v24, {16+j}")
        e("v_lshl_or_b32 v26, v26, 3, v1")
        for j in range(0, 24, 3):
            for d in range(3):
                e(f"v_cmp_gt_u32 s[{40+2*d}:{41+2*d}], s{16+j+d}, v24")
            for d in range(3):
                e(f"v_addc_co_u32 v25, vcc, 0, v25, s[{40+2*d}:{41+2*d}]")
        e("v_readlane_b32 s48, v26, s14\ns_nop 1\nv_cmp_gt_u32 vcc, s48, v26\ns_and_b32 s48, vcc_lo, 0xff\ns_bcnt1_i32_b32 s48, s48")
        for k in map(int, str(o.kord)):
            e(f"v_cmp_eq_u32 vcc, s48, v25\ns_and_b32 vcc_lo, vcc_lo, 0xffff0000\ns_and_b32 vcc_hi, vcc_hi, 0xff\ns_ff1_i32_b64 s{38+k}, vcc\ns_add_u32 s48, s48, 8")
    else:
        for k in range(2, 5):
            e(f"s_add_u32 s{38+k}, s14, {8*k}")
    e(f"s_lshl_b32 s48, s14, 2\nv_mov_b32 v24, s48")
    for k in range(2, 5):
        e(f"v_readlane_b32 s{SL+k}, v10, s{38+k}\nv_readlane_b32 s{SC+k}, v15, s{38+k}\ns_lshl_b32 s48, s{38+k}, 9")
        e(f"v_add_u32 v{10+k}, s{SL+k}, v18\nv_mov_b32 v{23+k}, s48")
    for k in range(2, 5):
        e(f"ds_read2st64_b32 v[{2+2*k}:{3+2*k}], v{10+k} offset0:0 offset1:1")
    e("s_mov_b64 exec, 1")
    for k in range(2, 5):
        e(f"ds_write_b32 v24, v{23+k} offset:{C_PERM + 32*GRP[k]}")
    e("s_mov_b64 exec, -1")
    for i in range(40):
        e(f"v_mov_b32 v{32+i}, 0")
    for k in range(5):
        e(f"s_lshl_b32 s{SL+k}, s{SL+k}, 1\ns_lshl_b32 s{STB+k}, s14, 11\ns_add_u32 s{STB+k}, s{STB+k}, {L_T + 16384*GRP[k]}\ns_add_u32 s{SX+k}, s14, {8*(GRP[k] & 1)}")
        e(f"s_mov_b32 s{SS+k}, {C_STAGE + 4*(GRP[k] >> 1)}")
    e(f"s_mov_b32 s86, s{SC}")
    e("s_waitcnt lgkmcnt(0)")
    for r in range(4, 12):
        scale(r)
    e("s_branch L_hloop")
    e.sec("loop")
    e("L_late:\nL_hloop:")
    for t in range(10):
        sp, k = divmod(t, 5)
        nsp, nk = divmod((t + 1) % 10, 5)
        cb, nb = BUF[t % 2], BUF[(t + 1) % 2]
        oth = others(t, "")
        if not o.lfirst:
            e("\n".join(oth)); oth = []
        def some(i, n):
            e("\n".join(oth[len(oth) * i // n:len(oth) * (i + 1) // n]))
        if o.po:
            a_, b_ = o.po[1 + t], o.py[1 + t]
            if a_ == b_:
                e(f"s_setprio {a_}")
            else:
                e(f"s_setprio {b_}\ns_cmp_ge_u32 s14, 4\ns_cbranch_scc1 L_pr{t}\ns_setprio {a_}\nL_pr{t}:")
        elif o.prio >= 2:
            pat = {2: [3, 2, 1, 0, 3, 2, 1, 0, 1, 0], 3: [3, 3, 2, 1, 0, 3, 3, 2, 1, 0], 4: [3, 3, 3, 2, 2, 2, 1, 1, 0, 0], 5: [2, 1, 0, 3, 2, 1, 0, 2, 1, 0], 6: [3, 3, 3, 3, 2, 2, 1, 1, 0, 3], 7: [3, 3, 2, 2, 2, 1, 1, 0, 0, 3], 8: [3, 3, 3, 3, 3, 3, 2, 1, 0, 3], 9: [2, 1, 0, 0, 3, 3, 2, 1, 0, 3], 10: [3, 2, 2, 1, 1, 1, 0, 0, 0, 3], 11: [3, 3, 3, 2, 2, 2, 2, 1, 0, 3], 12: [1, 0, 1, 0, 1, 3, 2, 1, 0, 2]}[o.prio]
            e(f"s_setprio {pat[t]}")
        if o.prio == 1 and t in (4, 9):
            e(f"s_cmp_eq_u32 s84, 0\ns_cbranch_scc1 L_pa{t}\ns_setprio 0\ns_branch L_pb{t}\nL_pa{t}:\ns_setprio {2 if t == 4 else 1}\nL_pb{t}:")
        cs = "s86" if t == 9 else f"s{SC+nk}"
        hs = "s85" if t == 9 else "s84"
        if nsp == 0:
            e(f"s_cmp_eq_u32 {cs}, 0\ns_cbranch_scc1 L_w{t}_0")
            for i in range(8):
                load(nk, i, nb + 4 * i, hs)
                if i < 6:
                    some(i, 6)
                if o.adpp and i == 5:
                    e("s_waitcnt lgkmcnt(0)"); expand(AR[0])
                if o.adpp and i == 6:
                    expand(AR[1])
            e(f"s_cmp_gt_u32 {cs}, 320\ns_cbranch_scc1 L_xl{t}")
            e("s_waitcnt vmcnt(8) lgkmcnt(0)")
        else:
            e(f"s_cmp_le_u32 {cs}, 128\ns_cbranch_scc1 L_w{t}_0")
            for i in range(5):
                load(nk, 8 + i, nb + 4 * i, hs)
                some(i, 5)
                if o.adpp and i == 3:
                    e("s_waitcnt lgkmcnt(0)"); expand(AR[0])
                if o.adpp and i == 4:
                    expand(AR[1])
            for i in range(5, 12):
                e(f"s_cmp_le_u32 {cs}, {16*(8+i)}\ns_cbranch_scc1 L_w{t}_{i}")
                load(nk, 8 + i, nb + 4 * i, hs)
            e(f"s_branch L_w{t}_12")
            for i in range(5, 12):
                e(f"L_w{t}_{i}:\ns_waitcnt vmcnt({i})")
            e(f"L_w{t}_12:\ns_waitcnt vmcnt(12) lgkmcnt(0)")
        e(f"L_go{t}:")
        swaps(cb); swaps(cb + 16)
        mm(k, AR[0], cb); mm(k, AR[1], cb + 16)
        if sp == 1:
            e(f"s_cmp_le_u32 s{SC+k}, 256\ns_cbranch_scc1 L_md{t}")
            expand(AR[2])
            swaps(cb + 32)
            e(f"s_cmp_gt_u32 s{SC+k}, 384\ns_nop 0")
            mm(k, AR[2], cb + 32)
            e(f"s_cbranch_scc1 L_more{t}")
            e(f"L_md{t}:")
        else:
            e(f"s_cmp_gt_u32 s{SC+k}, 320\ns_cbranch_scc1 L_xm{t}\nL_md{t}:")
        if o.tstamp:
            e(f"s_memrealtime s[76:77]\ns_mul_i32 s48, s14, 80\ns_lshr_b32 s49, s84, {7 if o.hsp else 8}\ns_mul_i32 s49, s49, 40\ns_add_u32 s48, s48, s49\ns_add_u32 s48, s48, {LDS + 4*t}\nv_mov_b32 v17, s48\ns_waitcnt lgkmcnt(0)\nv_mov_b32 v18, s76\nds_write_b32 v17, v18")
    if o.tail and o.tail2:
        fl = flush_l(4)
        e("s_cmp_lg_u32 s84, 0\ns_nop 7\n" + "\n".join(fl[:7]) + "\ns_cbranch_scc1 L_tdone\n" + "\n".join(fl[7:]))
    else:
        e("s_nop 8")
        flush(4)
        e("s_cmp_lg_u32 s84, 0\ns_cbranch_scc1 L_tdone")
    for k in range(5):
        e(f"s_add_u32 s{STB+k}, s{STB+k}, 256\ns_add_u32 s{SS+k}, s{SS+k}, 12")
    e(f"s_mov_b32 s84, {HO}\ns_mov_b32 s86, 0\ns_branch L_hloop")
    e("L_tdone:")
    if o.tail:
        e("s_waitcnt lgkmcnt(0)\ns_barrier")
    stamp(e, o, 9)
    if o.stamp:
        e("s_memtime s[76:77]\ns_waitcnt lgkmcnt(0)\ns_sub_u32 s99, s76, s98\ns_add_u32 s98, s72, 1")
    def adv_slow(lbl_round, lbl_done):
        e(f"s_cmp_eq_u32 s15, 0\ns_cbranch_scc1 {lbl_done}")
        e("s_add_u32 s61, s61, 1\ns_cmp_lt_u32 s61, 64\ns_cselect_b32 s48, 0, 16\ns_cselect_b32 s61, s61, 0\ns_add_u32 s60, s60, s48")
        e(f"s_cmp_ge_u32 s60, s64\ns_cbranch_scc1 {lbl_done}")
        e(f"s_waitcnt lgkmcnt(0)\ns_barrier\ns_branch {lbl_round}")
    adv_slow("L_slow_load", "L_gdone")
    e("L_gdone:")
    stamp_out(e, o)
    e("s_endpgm")
    for t in range(10):
        e(f"L_w{t}_0:")
        if o.lfirst:
            e("\n".join(others(t, "s")))
        if o.adpp:
            e("s_waitcnt lgkmcnt(0)"); expand(AR[0]); expand(AR[1])
        e(f"s_waitcnt vmcnt(0) lgkmcnt(0)\ns_branch L_go{t}")
    for t in range(10):
        sp, k = divmod(t, 5)
        nsp, nk = divmod((t + 1) % 10, 5)
        if sp == 0:
            if not o.adpp:
                e(f"L_xa{t}:")
                aread(5, AR[2])
                e(f"s_branch L_na{t}")
            e(f"L_xm{t}:")
            expand(AR[2])
            swaps(BUF[t % 2] + 32)
            e("s_nop 1")
            mm(k, AR[2], BUF[t % 2] + 32)
            e(f"s_branch L_md{t}")
        if nsp == 0:
            e(f"L_xl{t}:")
            for i in range(4):
                load(nk, 20 + i, BUF[(t + 1) % 2] + 32 + 4 * i, "s85" if t == 9 else "s84")
            e(f"s_waitcnt vmcnt(12) lgkmcnt(0)\ns_branch L_go{t}")
    e.sec("cold")
    for t in range(5, 10):
        k = t - 5
        cb = BUF[t % 2]
        e(f"L_more{t}:")
        for i in range(24, 32):
            e(f"s_cmp_le_u32 s{SC+k}, {16*i}\ns_cbranch_scc1 L_mi{t}")
            load(k, i, cb + 4 * (i - 24), "s84")
        e(f"L_mi{t}:")
        for G in range(6, 8):
            e(f"s_cmp_le_u32 s{SC+k}, {64*G}\ns_cbranch_scc1 L_mx{t}")
            aread(G, AR[0])
            e("s_waitcnt vmcnt(0) lgkmcnt(0)")
            expand(AR[0])
            swaps(cb + 16 * (G - 6))
            e("s_nop 1")
            mm(k, AR[0], cb + 16 * (G - 6))
        e(f"L_mx{t}:\ns_branch L_md{t}")
    e("L_slow_load:")
    e("s_barrier")
    e("v_and_b32 v2, 15, v0\nv_lshrrev_b32 v3, 4, v1\nv_mov_b32 v23, 4\nv_mov_b32 v17, 512\nv_lshlrev_b32 v18, 2, v3\nv_lshl_add_u32 v18, v2, 4, v18")
    e("s_cmp_ge_u32 s14, 1\ns_cbranch_scc1 L_placed")
    e("s_lshl_b32 s48, s61, 2\nv_add_u32 v6, s48, v3")
    vrow(7, 6, 8)
    e("v_add_u32 v7, s75, v7")
    e("global_load_dword v8, v7, s[8:9] sc1")
    e(f"v_mul_u32_u24 v6, {REC_STRIDE}, v6\nv_add_u32 v10, s60, v2\nv_mov_b32 v25, {KEYLIM}")
    e("s_waitcnt vmcnt(0)")
    e("v_bfe_u32 v9, v8, 12, 12\nv_and_b32 v8, 0xfff, v8\nv_add_u32 v8, v8, v10\nv_mul_u32_u24 v8, 12, v8\nv_add_u32 v35, v8, v6")
    e("v_cmp_lt_u32 vcc, v10, v9\ns_and_b64 exec, exec, vcc")
    e("s_cbranch_execz L_placed")
    e("global_load_dwordx3 v[32:34], v35, s[8:9] sc1\ns_waitcnt vmcnt(0)")
    rank(32)
    e("s_waitcnt lgkmcnt(0)")
    place(32)
    e("s_branch L_placed")

    e.sec("aux")
    e("L_p89:")
    assert not o.eplate
    e(f"s_lshl_b32 s48, s2, 7\ns_add_u32 s48, s48, {FLAG_OFF}\nv_mov_b32 v30, s48\nv_mov_b32 v48, s73\nv_not_b32 v49, v48")
    e("s_waitcnt vmcnt(0)")
    stamp(e, o, 5)
    e("s_barrier")
    e("s_cmp_lg_u32 s14, 8\ns_cbranch_scc1 L_gemm")
    e("s_mov_b64 exec, 1\nglobal_store_dwordx2 v30, v[48:49], s[8:9] sc1\ns_mov_b64 exec, -1")
    e("s_branch L_gemm")

    def init_cnt(vz, r):
        e(f"v_mul_u32_u24 v{r+1}, {2*KSTR}, v1\nv_add_u32 v{r}, {L_KEY + MID - 4}, v{r+1}\nv_add_u32 v{r+2}, {L_KEY + MID - 4 + KSTR}, v{r+1}\nv_add_u32 v{r+3}, {L_KEY + MID + KSTR}, v{r+1}\nv_add_u32 v{r+1}, {L_KEY + MID}, v{r+1}")
        e(f"v_cmp_gt_u32 vcc, 20, v1\nv_lshlrev_b32 {vz}, 4, v1\ns_nop 0")
        for q in range(r, r + 4):
            e(f"v_cndmask_b32 v{q}, 0, v{q}, vcc")
        e(f"ds_write_b128 {vz}, v[{r}:{r+3}]")
    e("L_helper:")
    zero_lists_all()
    common_consts()
    e("v_lshlrev_b32 v5, 4, v1")
    e("s_cmp_eq_u32 s14, 11\ns_cbranch_scc1 L_h11")
    e("s_waitcnt lgkmcnt(0)")
    if o.spf & 1:
        e("s_lshr_b32 s48, s2, 3\ns_mul_i32 s49, s48, 768\ns_lshl_b32 s48, s48, 9")
        e("s_add_u32 s32, s26, s48\ns_addc_u32 s33, s27, 0\ns_add_u32 s34, s28, s49\ns_addc_u32 s35, s29, 0")
        for i in range(4):
            e(f"s_load_dword s36, s[32:33], {128*i}")
        for i in range(6):
            e(f"s_load_dword s36, s[34:35], {128*i}")
        e("s_load_dword s36, s[24:25], 0")
    e("s_barrier")
    for _ in range(o.wpos - 1):
        e("s_barrier")
    if o.wsl:
        e(f"s_sleep {o.wsl}")
    for k in range(20):
        if k % 4 == 0:
            e(f"v_add_u32 v6, {1024*(k % 16)}, v5")
        e(f"global_load_dwordx4 v[{72+4*k}:{75+4*k}], v6, {'s[26:27]' if k < 16 else 's[28:29]'} offset:{1024*(k%4)}")
    e(f"v_add_u32 v7, {P_W}, v5")
    e("s_branch L_h2")
    e("L_h11:")
    init_cnt("v12", 32)
    e("s_waitcnt lgkmcnt(0)")
    if o.spf & 2:
        for base, offs in (("s[8:9]", [30720 + REC_STRIDE * 68 * i for i in range(4)] + [TAB_OFF + 2048]), ("s[4:5]", [0, 2 << 20, 4 << 20]), ("s[10:11]", [0, 2 << 20, 4 << 20])):
            for off in offs:
                e(f"s_mov_b32 s37, {off}\ns_load_dword s36, {base}, s37")
    e("s_barrier")
    for _ in range(o.wpos - 1):
        e("s_barrier")
    if o.wsl:
        e(f"s_sleep {o.wsl}")
    for k in range(20):
        if k % 4 == 0:
            e(f"v_add_u32 v6, {4096 + 1024*k}, v5")
        e(f"global_load_dwordx4 v[{72+4*k}:{75+4*k}], v6, s[28:29] offset:{1024*(k%4)}")
    e(f"v_add_u32 v7, {P_W + 20480}, v5")
    e("L_h2:")
    e("v_min_u32 v6, 624, v5")
    e("global_load_dwordx4 v[152:155], v6, s[24:25]")
    CPF2 = "v_add_u32 v70, L_late-L_pc, v70\nv_min_u32 v70, L_cold-L_pc, v70\nglobal_load_dword v4, v70, s[46:47]"
    if o.cpf and o.cpf2 == 1:
        e(CPF2)
    def xph():
        e("s_lshl_b32 s48, s2, 1\ns_add_u32 s48, s48, s14\ns_sub_u32 s48, s48, 10\ns_mul_i32 s48, s48, 10240\nv_lshlrev_b32 v30, 7, v1")
        e("buffer_load_dword v31, v30, s[4:7], s48 offen\ns_add_u32 s48, s48, 8192\ns_mov_b64 exec, 0xffff\nbuffer_load_dword v31, v30, s[4:7], s48 offen\ns_mov_b64 exec, -1")
    if o.xpos == "A":
        xph()
    if o.wpos < 2:
        e("s_barrier")
    e("s_waitcnt vmcnt(0)")
    if o.wlate and o.wpos < 3:
        e("s_barrier")
    for k in range(20):
        e(f"ds_write_b128 v7, v[{72+4*k}:{75+4*k}] offset:{1024*k}")
    e(f"v_add_u32 v7, {P_WR}, v5\nds_write_b128 v7, v[152:155]")
    if not o.wlate:
        e("s_waitcnt lgkmcnt(0)\ns_barrier")
    if o.cpf and o.cpf2 == 2:
        e(CPF2)

    e("; waves 8-11: wave j owns output channels 16j..16j+15 of all four blocks")
    e("L_gemm:")
    e("s_sub_u32 s51, s14, 8")
    e("v_and_b32 v9, 7, v2")
    for c in range(4):
        e(f"v_add_u32 v8, {4*c}, v3\nv_xor_b32 v8, v8, v2\nv_lshlrev_b32 v8, 4, v8\nv_lshl_add_u32 v8, v2, 11, v8\nv_add_u32 v{16+c}, {L_T}, v8")
        e(f"v_add_u32 v8, {4*c}, v3\nv_xor_b32 v8, v8, v9\nv_lshlrev_b32 v8, 4, v8\nv_lshl_add_u32 v8, v9, 11, v8\nv_add_u32 v{20+c}, {L_T + 65536}, v8")
    e(f"v_mul_u32_u24 v5, 528, v2\nv_lshl_add_u32 v5, v3, 3, v5\ns_lshl_b32 s48, s51, 5\ns_add_u32 s48, s48, {L_KEY}\nv_add_u32 v5, s48, v5")
    e(f"v_lshrrev_b32 v6, 5, v1\nv_lshlrev_b32 v6, 4, v6\nv_lshl_add_u32 v6, v1, 4, v6\nv_add_u32 v6, {L_KEY}, v6")
    e("v_lshlrev_b32 v7, 4, v1")
    e("s_mov_b32 s40, s10\ns_mov_b32 s41, s11\ns_add_u32 s42, s12, s13\ns_lshl_b32 s42, s42, 9\ns_mov_b32 s43, 0x20000\ns_lshl_b32 s44, s12, 9")
    e("v_mov_b32 v14, 0\nv_mov_b32 v12, 1\ns_mov_b32 s45, 0xbfb8aa3b")
    e(f"s_lshl_b32 s48, s51, 5\ns_add_u32 s48, s48, {P_W}")
    e("v_lshrrev_b32 v28, 2, v2\nv_lshl_add_u32 v28, v3, 3, v28\nv_lshlrev_b32 v28, 7, v28\nv_and_b32 v29, 3, v2\nv_lshl_add_u32 v28, v29, 3, v28\nv_add_u32 v28, s48, v28")
    e(f"v_lshlrev_b32 v29, 4, v3\nv_add_u32 v29, {P_WR}, v29")
    if o.wlate:
        assert o.ackgate
        e(("s_waitcnt vmcnt(0) lgkmcnt(0)" if o.ackgate == 1 else "s_waitcnt lgkmcnt(0)") + "\ns_barrier")
    for f in range(10):
        e(f"ds_read_b64_tr_b16 v[{VW+4*f}:{VW+1+4*f}], v28 offset:{4096*f}")
        e(f"ds_read_b64_tr_b16 v[{VW+2+4*f}:{VW+3+4*f}], v28 offset:{4096*f+512}")
        e(f"ds_read_b128 v[{VF+4*f}:{VF+3+4*f}], v29 offset:{64*f}")
    if o.ackgate and not o.wlate:
        e("s_waitcnt vmcnt(0)\ns_barrier")
    if o.xpos == "B":
        e("s_cmp_lt_u32 s14, 10\ns_cbranch_scc1 L_nxb")
        xph()
        e("L_nxb:")
    if o.pbar:
        e("s_barrier")
    def spf(ph, n, lbl, skip=0):
        if not n:
            return
        e("s_lshr_b32 s48, s2, 3\ns_lshl_b32 s48, s48, 2\ns_add_u32 s48, s48, s51\ns_min_u32 s48, s48, 124\ns_mul_i32 s48, s48, 20480")
        e(f"s_add_u32 s48, s48, {(ph & 1) * 2560000 + (ph >> 1) * 256}\ns_add_u32 s46, s4, s48\ns_addc_u32 s47, s5, 0")
        e(f"s_and_b32 s48, s2, 7\ns_mul_i32 s48, s48, 2560\ns_add_u32 s48, s48, {512 * skip}\ns_mov_b32 s49, {n}")
        e(f"{lbl}:\ns_cmp_ge_u32 s48, 20480\ns_cselect_b32 s39, 20480, 0\ns_sub_u32 s48, s48, s39\ns_add_u32 s36, s46, s48\ns_addc_u32 s37, s47, 0\ns_waitcnt lgkmcnt(11)")
        for i in range(4):
            e(f"s_load_dword s87, s[36:37], {64*i}")
        e(f"s_add_u32 s48, s48, 512\ns_sub_u32 s49, s49, 1\ns_cmp_lg_u32 s49, 0\ns_cbranch_scc1 {lbl}")
    if o.p0 or o.p1:
        e("s_waitcnt lgkmcnt(0)")
        spf(0, o.p0, "L_sr0"); spf(1, o.p1, "L_sr1")
    def wscale():
        for i in range(48):
            e(f"v_mov_b32 v{VO+i}, 0")
        e("s_waitcnt lgkmcnt(0)")
        for f in range(10):
            for d in range(4):
                half(e, 24, VW + 4 * f + d, 0); half(e, 25, VW + 4 * f + d, 1)
                half(e, 26, VF + 4 * f + d, 0); half(e, 27, VF + 4 * f + d, 1)
                e("v_mul_f32 v24, v24, v26\nv_mul_f32 v25, v25, v27")
                e(f"v_cvt_pk_bf16_f32 v{VW+4*f+d}, v24, v25")
        for d in range(8):
            e(f"v_xor_b32 v{VW+40+d}, 0x80008000, v{VW+32+d}")
    if o.wscale == 0:
        wscale()
    else:
        e("s_mov_b32 s66, 1")
    e.sec("cold")
    e("L_gnext:")
    e("v_mov_b32 v8, 0\nv_mov_b32 v9, 0\nv_mov_b32 v10, 0\nv_mov_b32 v11, 0")
    e("s_lshl_b32 s48, s51, 10\nv_lshl_add_u32 v13, v1, 4, s48\nv_add_u32 v15, 0x8000, v13")
    for k in range(18):
        e(f"ds_write_b128 {'v13' if k < 8 else 'v15'}, v[8:11] offset:{1024 + 4096*k - (0 if k < 8 else 32768)}")
    e("s_cmp_lg_u32 s51, 0\ns_cbranch_scc1 L_gn2")
    init_cnt("v13", 8)
    e("L_gn2:")
    e("s_waitcnt lgkmcnt(0)\ns_barrier\ns_branch L_gplaced")
    e.sec("aux")
    e("L_gplaced:")
    e(f"v_lshlrev_b32 v8, 3, v1\nv_mul_u32_u24 v9, {KSTR}, v1\nv_add_u32 v9, {L_KEY + MID}, v9")
    e("s_waitcnt lgkmcnt(0)\ns_barrier")
    check_overflow("L_m", "L_gnext")
    e("s_branch L_stages")
    e.sec("stages")
    e("L_stages:")
    if o.wscale:
        e("s_cmp_eq_u32 s66, 0\ns_cbranch_scc1 L_wdone")
        wscale()
        e("s_mov_b32 s66, 0\nL_wdone:")
    def xlate():
        e("s_lshl_b32 s48, s2, 2\ns_add_u32 s48, s48, s51\ns_mul_i32 s48, s48, 5120\ns_add_u32 s48, s48, 256")
        e("v_lshrrev_b32 v8, 1, v1\nv_lshlrev_b32 v8, 9, v8\nv_and_b32 v9, 1, v1\nv_lshl_add_u32 v8, v9, 7, v8")
        e("s_mov_b64 exec, 0xfffff\nbuffer_load_dword v4, v8, s[4:7], s48 offen\ns_mov_b64 exec, -1")
    if o.xlate == 1:
        xlate()
    if o.xlate == 7:
        e("; speed only: second row halves through the scalar cache")
        e("s_cmp_lg_u32 s15, 0\ns_cbranch_scc1 L_nsp")
        spf(1, o.n1, "L_sp1"); spf(3, o.n3, "L_sp3"); spf(2, o.n2, "L_sp2")
        e("L_nsp:")
    e("s_or_b32 s48, s2, s51\ns_cmp_lg_u32 s48, 0\ns_cbranch_scc1 L_noepoch")
    e(f"v_mov_b32 v8, {EPOCH_OFF}\nv_mov_b32 v9, s73\ns_mov_b64 exec, 1\nglobal_store_dword v8, v9, s[8:9] sc1\ns_mov_b64 exec, -1")
    e("L_noepoch:")
    e("s_waitcnt vmcnt(0)")
    if o.gprio:
        e(f"s_setprio {o.gprio}")
    e("s_mov_b32 s67, 1\ns_cmp_eq_u32 s15, 0\ns_cbranch_scc1 L_lastknown")
    e("s_add_u32 s48, s60, 16\ns_cmp_ge_u32 s48, s64\ns_cselect_b32 s67, 1, 0\ns_cmp_eq_u32 s61, 63\ns_cselect_b32 s67, s67, 0")
    e("L_lastknown:")
    blocks = []
    for s in range(4):
        for t in range(4):
            if s == 0 and t == 0: ob, kind = 0, 0
            elif s == t: ob, kind = 0, 1
            elif t == 0: ob, kind = s, 2
            elif s == 0: ob, kind = t, 3
            else:
                j, k = s - 1, t - 1
                i = 3 - j - k
                sign = 1 if (i, j, k) in ((0, 1, 2), (1, 2, 0), (2, 0, 1)) else -1
                ob, kind = 1 + i, 4 if sign > 0 else 5
            blocks.append((s, t, ob, kind))
    NF = 8
    stages = [(h, tau) for h in range(2) for tau in ((0, 2, 1) if o.tord else (0, 1, 2))]
    def finish(tau):
        e(f"s_cmp_eq_u32 s67, 0\ns_cbranch_scc1 L_nofin_{tau}")
        e("s_nop 5")
        a = VO + 16 * tau
        for r in range(4):
            e(f"v_mul_f32 v{8+r}, s45, v{a+r}")
        for r in range(4):
            e(f"v_exp_f32 v{8+r}, v{8+r}")
        e(f"v_cvt_pk_bf16_f32 v24, v{a}, v{a+1}\nv_cvt_pk_bf16_f32 v25, v{a+2}, v{a+3}")
        e(f"ds_write_b64 v5, v[24:25] offset:{OST[tau]}")
        for r in range(4):
            e(f"v_add_f32 v{8+r}, 1.0, v{8+r}")
        for r in range(4):
            e(f"v_rcp_f32 v{8+r}, v{8+r}")
        e("s_nop 0")
        for ob in range(1, 4):
            for r in range(4):
                e(f"v_mul_f32 v{a+4*ob+r}, v{a+4*ob+r}, v{8+r}")
            e(f"v_cvt_pk_bf16_f32 v{24+2*ob}, v{a+4*ob}, v{a+4*ob+1}\nv_cvt_pk_bf16_f32 v{25+2*ob}, v{a+4*ob+2}, v{a+4*ob+3}")
            e(f"ds_write_b64 v5, v[{24+2*ob}:{25+2*ob}] offset:{OST[tau] + 128*ob}")
        e(f"s_mov_b64 exec, 1\nds_add_rtn_u32 v8, v14, v12 offset:{C_STORE + 4*tau}\ns_mov_b64 exec, -1")
        e(f"s_waitcnt lgkmcnt(0)\nv_readfirstlane_b32 s48, v8\ns_cmp_lg_u32 s48, 3\ns_cbranch_scc1 L_nofin_{tau}")
        nk = 8 if tau < 2 else 4
        for k in range(nk):
            e(f"ds_read_b128 v[{VF+4*k}:{VF+3+4*k}], v6 offset:{OST[tau] + 1056*k}")
        for k in range(nk):
            if tau == 0 and k % 4 == 0:
                e(f"s_add_u32 s48, s44, {1024*k}")
            e(f"s_waitcnt lgkmcnt({nk-1-k})")
            if tau == 0:
                e(f"buffer_store_dwordx4 v[{VF+4*k}:{VF+3+4*k}], v7, s[40:43], s48 offen offset:{1024*(k%4)} {o.ostore}")
            else:
                e(f"buffer_store_dwordx4 v[{VF+4*k}:{VF+3+4*k}], v{VF+32+k}, s[40:43], s44 offen {o.ostore}")
        e(f"L_nofin_{tau}:")
    def last_stage(h, tau):
        a = VO + 16 * tau
        e("v_lshrrev_b32 v8, 5, v1\ns_lshl_b32 s48, s51, 4\nv_lshl_add_u32 v8, v8, 2, s48\nv_and_b32 v9, 0x1f0, v7")
        e(f"ds_read2_b32 v[{VF+32}:{VF+33}], v8 offset0:{(C_PERM + 64*tau)//4} offset1:{(C_PERM + 64*tau)//4 + 2}")
        e("s_mul_i32 s48, s51, 2112\nv_add_u32 v13, s48, v6\ns_waitcnt lgkmcnt(0)")
        e(f"v_add_u32 v{VF+32}, v9, v{VF+32}\nv_add_u32 v{VF+33}, v9, v{VF+33}")
        e("s_barrier")
        stamp(e, o, 9)
        steps = sorted([(ob, s, t, kind, ks) for (s, t, ob, kind) in blocks if hof(t) == h for ks in range(2)])
        ops = []
        def fread(n):
            ob, s, t, kind, ks = steps[n]
            off = (tau % 2) * 32768 + s * 512 + h * 256
            e(f"ds_read_b128 v[{VF+4*(n%NF)}:{VF+3+4*(n%NF)}], v{16 + 2*sub(t) + ks + (4 if tau == 2 else 0)} offset:{off}")
            ops.append(n)
        def outblk(ob):
            src = a
            if ob:
                src = 28
                for r in range(4):
                    e(f"v_mul_f32 v{28+r}, v{a+4*ob+r}, v{8+r}")
            p = 24 + 2 * (ob % 2)
            e(f"v_cvt_pk_bf16_f32 v{p}, v{src}, v{src+1}\nv_cvt_pk_bf16_f32 v{p+1}, v{src+2}, v{src+3}")
            e(f"ds_write_b64 v5, v[{p}:{p+1}] offset:{OST[tau] + 128*ob}")
            ops.append(-1)
        for n in range(NF - 1):
            fread(n)
        for n in range(16):
            ob, s, t, kind, ks = steps[n]
            if n + NF - 1 < 16:
                fread(n + NF - 1)
            e(f"s_waitcnt lgkmcnt({len(ops) - 1 - ops.index(n)})")
            w = VW + 8 * kind + 4 * ks
            e(f"v_mfma_f32_16x16x32_bf16 v[{a+4*ob}:{a+4*ob+3}], v[{w}:{w+3}], v[{VF+4*(n%NF)}:{VF+3+4*(n%NF)}], v[{a+4*ob}:{a+4*ob+3}]")
            if n == 6:
                for r in range(4):
                    e(f"v_mul_f32 v{8+r}, s45, v{a+r}")
            if n in (7, 8):
                for r in range(2 * (n - 7), 2 * (n - 7) + 2):
                    e(f"v_exp_f32 v{8+r}, v{8+r}")
            if n == 9:
                for r in range(4):
                    e(f"v_add_f32 v{8+r}, 1.0, v{8+r}")
            if n in (10, 11):
                for r in range(2 * (n - 10), 2 * (n - 10) + 2):
                    e(f"v_rcp_f32 v{8+r}, v{8+r}")
            if n == 12:
                outblk(0)
            if n == 13:
                outblk(1)
        outblk(2)
        e("s_cmp_eq_u32 s67, 0")
        outblk(3)
        e(f"s_cbranch_scc1 L_nofin_{tau}")
        e("s_waitcnt lgkmcnt(0)\ns_barrier")
        for k in range(2):
            e(f"ds_read_b128 v[{VF+4*k}:{VF+3+4*k}], v13 offset:{OST[tau] + 1056*k}")
        for k in range(2):
            e(f"s_waitcnt lgkmcnt({1-k})\nbuffer_store_dwordx4 v[{VF+4*k}:{VF+3+4*k}], v{VF+32+k}, s[40:43], s44 offen {o.ostore2}")
        e(f"L_nofin_{tau}:")
    for (h, tau) in stages:
        if o.tail and (h, tau) == stages[-1]:
            assert tau == 1
            last_stage(h, tau)
            continue
        if (o.exp & 8) and (h, tau) != stages[-1]:
            continue
        if h == 1 and tau > 0:
            nk = 8 if tau < 2 else 4
            e("v_lshrrev_b32 v8, 5, v1\nv_lshlrev_b32 v8, 2, v8\nv_and_b32 v9, 0x1f0, v7")
            for k in range(nk):
                e(f"ds_read_b32 v{VF+32+k}, v8 offset:{C_PERM + 64*tau + 8*k}")
            e("s_waitcnt lgkmcnt(0)")
            for k in range(nk):
                e(f"v_add_u32 v{VF+32+k}, v9, v{VF+32+k}")
        e("s_mov_b32 s72, 0")
        e(f"L_poll_{h}_{tau}:")
        e(f"ds_read_b32 v8, v14 offset:{C_STAGE + 4*(3*h+tau)}\ns_waitcnt lgkmcnt(0)\nv_readfirstlane_b32 s48, v8")
        e(f"s_cmp_ge_u32 s48, {16 if tau < 2 else 8}\ns_cbranch_scc1 L_go_{h}_{tau}")
        e(f"s_sleep {1 if (h, tau) == stages[-1] else o.psleep}\ns_add_u32 s72, s72, 1\ns_cmp_lt_u32 s72, 0x40000\ns_cbranch_scc1 L_poll_{h}_{tau}\ns_endpgm")
        e(f"L_go_{h}_{tau}:")
        if (h, tau) == stages[-1]:
            stamp(e, o, 9)
        steps = [(s, t, ob, kind, ks) for (s, t, ob, kind) in blocks if hof(t) == h for ks in range(2)]
        def fread(n):
            s, t, ob, kind, ks = steps[n]
            off = (tau % 2) * 32768 + s * 512 + h * 256
            e(f"ds_read_b128 v[{VF+4*(n%NF)}:{VF+3+4*(n%NF)}], v{16 + 2*sub(t) + ks + (4 if tau == 2 else 0)} offset:{off}")
        for n in range(NF - 1):
            fread(n)
        for n in range(len(steps)):
            s, t, ob, kind, ks = steps[n]
            if n + NF - 1 < len(steps):
                fread(n + NF - 1)
            e(f"s_waitcnt lgkmcnt({min(NF - 1, len(steps) - 1 - n)})")
            acc = VO + 16 * tau + 4 * ob
            w = VW + 8 * kind + 4 * ks
            e(f"v_mfma_f32_16x16x32_bf16 v[{acc}:{acc+3}], v[{w}:{w+3}], v[{VF+4*(n%NF)}:{VF+3+4*(n%NF)}], v[{acc}:{acc+3}]")
        if o.xlate and h == 0 and (h, tau) == stages[o.xlate - 2]:
            xlate()
        if o.n3b and (h, tau) == stages[2]:
            e("s_cmp_lg_u32 s15, 0\ns_cbranch_scc1 L_nsq")
            spf(3, o.n3b, "L_sq3", o.n3)
            e("L_nsq:")
        if h == 1:
            finish(tau)
    adv_slow("L_gnext", "L_final")
    e("L_final:")
    if o.tstamp:
        e(f"s_mov_b64 exec, -1\nv_lshlrev_b32 v8, 4, v1\nv_add_u32 v9, {LDS}, v8\nds_read_b128 v[24:27], v9")
        e(f"s_lshl_b32 s48, s2, 10\ns_add_u32 s48, s48, {STAMP_OFF + (2 << 20)}\nv_add_u32 v8, s48, v8\ns_waitcnt lgkmcnt(0)\nglobal_store_dwordx4 v8, v[24:27], s[8:9]")
    if o.stamp:
        e("s_waitcnt vmcnt(0)")
        stamp(e, o, 11)
        stamp_out(e, o)
    e("L_end:\ns_endpgm")

DOC = r'''
; ---------------------------------------------------------------------------------------------------------
;              records {coef01, coef23, key} plus one table row {start, count, tag | checksum + tag} to d_ws.
; ---------------------------------------------------------------------------------------------------------
'''

def generate(o):
    e = Asm()
    K = NAME + "_kernel"
    lds = LDS + (1024 if o.tstamp else 0)
    head = HEADER + (f"; @launch kernel={K} grid=(256,1,1) block=(768,1,1) lds={lds}\n" if o.aslist else f"; @launch grid=(256,1,1) block=(768,1,1) lds={lds}\n")
    e(f'.amdgcn_target "amdgcn-amd-amdhsa--gfx950"')
    e.l.extend(DOC.strip("\n").split("\n"))
    e(f'.text\n.globl {K}')
    gen(e, o)
    return head + e.text(['head', 'aux', 'loop', 'stages', 'cold']) + KD.format(name=K, vgpr=168, sgpr=102, accum=168)

if __name__ == "__main__":
    kw = {}
    out = f"cdna_kernels/{NAME}.s"
    for a in sys.argv[1:]:
        k, v = a.split("=")
        if k == "out":
            out = v
        else:
            kw[k] = {"True": True, "False": False}.get(v, int(v) if v.lstrip("-").isdigit() else v)
    open(out, "w").write(generate(Opt(**kw)))
    print("wrote", out)
```

```python
import sys
from gen3 import KD, NAME, HEADER, stamp, stamp_init, stamp_out, half, STAMP_OFF

REC_STRIDE = 30848
TAB_STRIDE = 2176
TAB_OFF = 8 << 20
EPOCH_OFF = 10 << 20
CHK_OFF = 9 << 20
CHK_ROW = 2048 + 128
FLAG_OFF = CHK_OFF + (1 << 19)
assert 256 * REC_STRIDE <= TAB_OFF

class Asm:
    def __init__(self):
        self.s = {}
        self.sec("head")
    def sec(self, name):
        self.l = self.s.setdefault(name, [])
    def __call__(self, s):
        for x in s.split("\n"):
            x = x.strip()
            if x:
                self.l.append(x if x.endswith(":") and not x.startswith(";") else "    " + x)
    def text(self, order):
        assert sorted(order) == sorted(self.s), (order, list(self.s))
        return "\n".join(l for n in order for l in self.s[n]) + "\n"

class Opt:
    stamp = False
    tstamp = False
    nt = False
    psleep = 4
    ostore = "sc1"
    aslist = False
    cpf = 1
    tsleep = 1
    tsleep0 = 0
    srcpos = 1
    pbar = 0
    bal = 1
    ackgate = 0
    forcefail = 0
    tord = 1
    tail = 1
    kord = '432'
    wscale = 1
    cpf2 = 0
    wlate = 0
    dpf = 8
    wpf = 0
    spf = 13
    scpf = 0
    w1new = 1
    exp = 0
    po = 'p3222111002'
    py = 'p3322211103'
    trim = 1
    wpos = 1
    wsl = 0
    fast = 0
    hsp = 0
    tail2 = 1
    eplate = 0
    ppos = 3
    wfirst = 0
    retry = 1
    xat = 7
    xold = 0
    zmid = 96
    halves = 1
    hlate = 1
    pre = 1
    adpp = 0
    sx = 0
    sxpos = 1
    n1 = 0
    n2 = 10
    n3 = 5
    n3b = 0
    p0 = 0
    p1 = 0
    zlate = 0
    stag = 0
    stagbit = 7
    nodup = 1
    tshare = 2
    xlate = 7
    ostore2 = 'sc1'
    lfirst = 0
    xpf = 0
    xpre = 1
    xpos = 'C2'
    xl = 16
    pmask = 1
    nmap = 0
    prio = 7
    gprio = 3
    split = 5000
    first = 32
    def __init__(self, **kw):
        for k, v in kw.items():
            assert hasattr(self, k), k
            setattr(self, k, v)

CL = 68
NSL = 152
KSTR = 4 * NSL
MID = 4 * CL
L_CNT = 0
C_STAGE, C_STORE, C_MAX, C_TASK, C_FLAG = 320, 352, 368, 372, 512
L_KEY = 1024
KEYLIM = L_KEY + 40 * KSTR
L_COEF = 25600
COFF = L_COEF - 2 * L_KEY
L_T = 74496
assert 2 * KEYLIM + COFF + 8 <= L_T and L_T % 256 == 0
P_HIST = 75776
P_BASES = P_HIST + 3072
P_STAGE = P_BASES + 10240
P_W = P_STAGE + 30720
P_WR = P_W + 40960
LDS = P_WR + 1024
assert LDS >= L_T + 40 * 2048 and LDS <= 163840
OST = [L_COEF - L_KEY, L_COEF - L_KEY + 8448, 0]
C_PERM = C_FLAG
NLC = 12
NGC = NLC // 4
VB, VA, VACC = 72, 48, 24
VW, VO, VF = 32, 80, 128
VC0, VC1 = VB + 32, VB + 80

def gen(e, o):
    HO = 128 if o.hsp else 256
    hof = (lambda t: t % 2) if o.hsp else (lambda t: t // 2)
    sub = (lambda t: t // 2) if o.hsp else (lambda t: t % 2)
    TS = o.tshare
    TROW = 2048 * TS + 128
    def vrow(dst, p, tmp):
        if TS == 1:
            e(f"v_mul_u32_u24 v{dst}, {TAB_STRIDE}, v{p}")
        else:
            lg = TS.bit_length() - 1
            e(f"v_lshrrev_b32 v{tmp}, {5 + lg}, v{p}\nv_lshlrev_b32 v{tmp}, 5, v{tmp}\nv_and_or_b32 v{tmp}, v{p}, 31, v{tmp}\nv_mul_u32_u24 v{tmp}, {TROW}, v{tmp}")
            e(f"v_bfe_u32 v{dst}, v{p}, 5, {lg}\nv_lshl_add_u32 v{dst}, v{dst}, {7 - lg}, v{tmp}")
    def crow(dst, p, tmp):
        e(f"v_lshrrev_b32 v{tmp}, 6, v{p}\nv_lshlrev_b32 v{tmp}, 5, v{tmp}\nv_and_or_b32 v{tmp}, v{p}, 31, v{tmp}\nv_mul_u32_u24 v{tmp}, {CHK_ROW}, v{tmp}")
        e(f"v_bfe_u32 v{dst}, v{p}, 5, 1\nv_lshl_add_u32 v{dst}, v{dst}, 6, v{tmp}")
    nt = " nt" if o.nt else ""
    K = NAME + "_kernel"
    e(f".p2align 8\n.type {K},@function\n{K}:")
    if o.fast:
        n = 192 // o.dpf
        e("s_load_dwordx16 s[16:31], s[0:1], 8")
        e("s_cmpk_ge_u32 s2, 256\ns_cbranch_scc1 L_end")
        stamp_init(e, o)
        e("s_getpc_b64 s[46:47]\nL_pc:")
        e(f"s_bfe_u32 s48, s2, {hex(((o.dpf.bit_length() - 1) << 16) | 3)}\ns_mulk_i32 s48, {n * 128}\nv_lshl_add_u32 v70, v0, 7, s48\nv_min_u32 v70, L_cold-L_pc, v70")
        e(f"v_cmp_gt_u32 vcc, {n}, v0\ns_and_saveexec_b64 s[44:45], vcc\ns_cbranch_execz L_pfd")
        e("global_load_dword v71, v70, s[46:47]")
        e("L_pfd:\ns_mov_b64 exec, -1")
        e("v_min_u32 v5, 624, v0\ns_mul_i32 s48, s2, 625\nv_add_lshl_u32 v6, v5, s48, 4")
        HZ = f"v_lshlrev_b32 v26, 2, v0\nv_add_u32 v26, {P_HIST}, v26\nv_mov_b32 v64, 0\nds_write_b32 v26, v64"
        PT = "s_load_dwordx2 s[8:9], s[0:1], 88\ns_load_dwordx2 s[4:5], s[0:1], 0\ns_load_dwordx2 s[10:11], s[0:1], 72"
        if o.fast == 2:
            e(PT + "\n" + HZ)
        if o.fast == 3:
            e(HZ)
        e("s_waitcnt lgkmcnt(0)")
        e(f"global_load_dwordx4 v[8:11], v6, s[22:23]{nt}")
        if o.fast == 1:
            e(PT + "\n" + HZ)
        if o.fast == 3:
            e(PT)
        e("v_lshrrev_b32 v4, 6, v0\ns_nop 0")
        e("v_readfirstlane_b32 s14, v4\nv_and_b32 v1, 63, v0")
        e("v_lshrrev_b32 v7, 1, v6\nv_add_u32 v5, v6, v7")
        e("s_cmp_ge_u32 s14, 10")
        if o.fast == 1:
            e("s_waitcnt lgkmcnt(0)")
        e("s_barrier\ns_cbranch_scc1 L_helper")
    else:
        e("s_cmp_ge_u32 s2, 256\ns_cbranch_scc1 L_end")
        stamp_init(e, o)
        e("s_load_dwordx8 s[16:23], s[0:1], 8")
        e("s_load_dwordx2 s[8:9], s[0:1], 88")
        e("s_load_dwordx2 s[4:5], s[0:1], 0")
        e("s_load_dwordx4 s[24:27], s[0:1], 40")
        e("s_load_dwordx2 s[28:29], s[0:1], 56")
        e("s_load_dwordx2 s[10:11], s[0:1], 72")
        e("v_lshrrev_b32 v4, 6, v0\nv_and_b32 v1, 63, v0")
        e("v_min_u32 v5, 624, v0")
        e("v_readfirstlane_b32 s14, v4")
        e("s_mul_i32 s48, s2, 625\nv_add_u32 v5, s48, v5")
        e("v_lshlrev_b32 v6, 4, v5")
        e(f"v_lshlrev_b32 v26, 2, v0\nv_add_u32 v26, {P_HIST}, v26\nv_mov_b32 v64, 0")
        e("ds_write_b32 v26, v64")
        e("s_cmp_lt_u32 s14, 10\ns_cbranch_scc1 L_prod")
        if o.scpf:
            n = 160 // (2 * o.scpf)
            e("s_getpc_b64 s[46:47]\nL_pc:")
            e(f"s_lshr_b32 s48, s2, 2\ns_and_b32 s48, s48, {2 * o.scpf - 2}\ns_add_u32 s48, s48, s14\ns_sub_u32 s48, s48, 10\ns_mul_i32 s48, s48, {n * 128}")
            e("s_add_u32 s46, s46, s48\ns_addc_u32 s47, s47, 0\ns_waitcnt lgkmcnt(0)")
            for i in range(n):
                e(f"s_load_dword s87, s[46:47], {128*i}")
            e("s_barrier\ns_branch L_helper")
        elif o.dpf:
            n = 192 // o.dpf
            e("s_getpc_b64 s[46:47]\nL_pc:")
            e(f"s_lshr_b32 s48, s2, 3\ns_and_b32 s48, s48, {o.dpf - 1}\ns_mul_i32 s49, s48, {n * 128}\nv_lshl_add_u32 v70, v1, 7, s49")
            e(f"s_mov_b64 exec, {hex((1 << n) - 1)}" if n <= 32 else f"s_mov_b32 exec_hi, {hex((1 << (n - 32)) - 1)}")
            e("s_cmp_eq_u32 s14, 11\ns_cbranch_scc1 L_wpf")
            e("v_min_u32 v70, L_cold-L_pc, v70\nglobal_load_dword v71, v70, s[46:47]\ns_branch L_pfd")
            e("L_wpf:")
            if o.spf & 8:
                e("; speed only: first touch of this workgroup's src, e_attr, rhat")
                e("s_mul_i32 s37, s2, 10000\ns_mul_i32 s38, s2, 5000\ns_mul_i32 s39, s2, 15000\ns_waitcnt lgkmcnt(0)")
                e("s_load_dword s87, s[20:21], s37\ns_load_dword s87, s[18:19], s38\ns_load_dword s87, s[16:17], s39\ns_mov_b64 exec, -1\ns_barrier\ns_branch L_helper")
            if o.wpf:
                e("v_min_u32 v69, 16380, v70\ns_waitcnt lgkmcnt(0)\nglobal_load_dword v71, v70, s[28:29]\nglobal_load_dword v71, v69, s[26:27]")
            e("L_pfd:\ns_mov_b64 exec, -1")
        elif o.cpf:
            e("s_getpc_b64 s[46:47]\nL_pc:")
            e("v_subrev_u32 v70, 640, v0\nv_lshlrev_b32 v70, 7, v70\nv_min_u32 v69, " + ("L_late" if o.cpf2 else "L_cold") + "-L_pc, v70")
            e("global_load_dword v71, v69, s[46:47]")
        e("s_waitcnt lgkmcnt(0)\ns_barrier")
        e("s_branch L_helper\nL_prod:")
        e("s_waitcnt lgkmcnt(0)")
        e(f"global_load_dwordx4 v[8:11], v6, s[22:23]{nt}")
        if not o.eplate:
            e(f"s_add_u32 s30, s8, {EPOCH_OFF}\ns_addc_u32 s31, s9, 0\ns_load_dword s73, s[30:31], 0")
        e("v_lshlrev_b32 v7, 3, v5\nv_mul_u32_u24 v5, 24, v5")
        if o.srcpos != 1:
            e(f"global_load_dwordx4 v[12:15], v6, s[20:21]{nt}")
        if o.srcpos != 2:
            e("s_barrier")
    def payload(a):
        if o.srcpos == 1:
            e(f"global_load_dwordx4 v[12:15], v6, s[20:21]{nt}")
        e(f"global_load_dwordx2 v[16:17], {a}, s[18:19]{nt}")
        e(f"global_load_dwordx4 v[20:23], v5, s[16:17]{nt}")
        e(f"global_load_dwordx2 v[24:25], v5, s[16:17] offset:16{nt}")
    if o.stag:
        e(f"v_mov_b32 v18, v7\ns_bitcmp1_b32 s2, {o.stagbit}\ns_cbranch_scc1 L_st1")
    payload("v7")
    if o.stag:
        e("L_st1:")
    if o.srcpos == 2:
        e("s_barrier")
    if o.fast and not o.eplate:
        e(f"s_waitcnt lgkmcnt(0)\ns_add_u32 s30, s8, {EPOCH_OFF}\ns_addc_u32 s31, s9, 0\ns_load_dword s73, s[30:31], 0")
    def common_consts():
        e("v_and_b32 v2, 15, v0\nv_lshrrev_b32 v3, 4, v1")
        e("s_and_b32 s3, s2, 7\ns_lshl_b32 s3, s3, 5\ns_lshr_b32 s12, s2, 3\ns_add_u32 s3, s3, s12")
        e("s_mov_b32 s6, 5120000\ns_mov_b32 s7, 0x20000")
        e("s_mul_i32 s12, s3, 625\ns_add_u32 s13, s12, 640\ns_add_u32 s12, s12, 15\ns_lshr_b32 s12, s12, 4\ns_lshr_b32 s13, s13, 4\ns_sub_u32 s13, s13, s12")
        e("s_mov_b32 s15, 0\ns_mov_b32 s60, 0\ns_mov_b32 s61, 0")
        e(f"s_lshr_b32 s75, s3, 2\ns_lshl_b32 s75, s75, 4\ns_and_b32 s58, s3, 1\ns_lshl_b32 s58, s58, 3\ns_add_u32 s75, s75, s58")
        e(f"s_and_b32 s58, s3, 2\ns_lshl_b32 s58, s58, 9\ns_add_u32 s75, s75, s58")
        if o.tshare > 1:
            PC = 128 // o.tshare
            e(f"s_and_b32 s58, s75, {PC - 1}\ns_sub_u32 s75, s75, s58\ns_mul_i32 s75, s75, {o.tshare}\ns_add_u32 s75, s75, s58")
        e(f"s_add_u32 s75, s75, {TAB_OFF}")
    def zero_lists_all():
        e("v_mov_b32 v65, 0\nv_mov_b32 v66, 0\nv_mov_b32 v67, 0\nv_lshlrev_b32 v68, 4, v0")
        for k in range(6):
            e(f"ds_write_b128 v68, v[64:67] offset:{1024 + 12288*k}")
    zero_lists_all()
    common_consts()
    e("v_mov_b32 v7, 1\nv_lshlrev_b32 v27, 4, v1")
    e(f"s_lshl_b32 s48, s14, 10\ns_add_u32 s48, s48, {P_BASES - P_HIST}")
    e("v_mov_b32 v69, 625\nv_cmp_lt_u32 s[62:63], v0, v69")
    e(f"v_mov_b32 v69, {P_HIST}\ns_mov_b32 s50, 0x3fc")
    if o.stag:
        e(f"s_bitcmp0_b32 s2, {o.stagbit}\ns_cbranch_scc1 L_st2\ns_waitcnt vmcnt(0)")
        if o.stag == 1:
            payload("v18")
        e("L_st2:")
    e("s_waitcnt vmcnt(4)")
    if not (o.exp & 16):
        stamp(e, o, 1)
    for i in range(4):
        e(f"v_mul_u32_u24 v{28+i}, 214749, v{8+i}")
    e("s_mov_b64 exec, s[62:63]")
    for i in range(4):
        e(f"v_lshrrev_b32 v{28+i}, 21, v{28+i}\nv_and_or_b32 v{28+i}, v{28+i}, s50, v69")
        e(f"ds_add_rtn_u32 v{32+i}, v{28+i}, v7")
    e("s_mov_b64 exec, -1")
    e("v_add_u32 v26, v27, v69")
    e("s_waitcnt lgkmcnt(0)\ns_barrier")
    if o.stag == 2:
        e(f"s_bitcmp0_b32 s2, {o.stagbit}\ns_cbranch_scc1 L_st3")
        payload("v18")
        e("L_st3:")
    e("ds_read_b128 v[56:59], v26")
    def tag():
        e("s_add_u32 s73, s73, 0x9e3779b1\ns_lshl_b32 s74, s73, 24")
    if not o.eplate:
        tag()
    e(f"s_mul_i32 s49, s2, {REC_STRIDE}\ns_lshl_b32 s51, s73, 31")
    stamp(e, o, 2)
    e("s_waitcnt lgkmcnt(0)")
    def scan():
        e("v_add_u32 v37, v56, v57\nv_add_u32 v38, v58, v59\nv_add_u32 v36, v37, v38")
        e("v_mov_b32 v39, v36\ns_nop 1")
        for sh in (1, 2, 4, 8):
            e(f"v_add_u32_dpp v39, v39, v39 row_shr:{sh} row_mask:0xf bank_mask:0xf\ns_nop 1")
        e("v_add_u32_dpp v39, v39, v39 row_bcast:15 row_mask:0xa bank_mask:0xf\ns_nop 1")
        e("v_add_u32_dpp v39, v39, v39 row_bcast:31 row_mask:0xc bank_mask:0xf")
        e("v_sub_u32 v60, v39, v36")
        e("v_add_u32 v61, v60, v56\nv_add_u32 v62, v60, v37\nv_add_u32 v63, v62, v58")
    scan()
    e("v_add_u32 v36, s48, v26")
    e("ds_write_b128 v36, v[60:63]")
    e("s_mov_b64 exec, s[62:63]")
    for i in range(4):
        e(f"v_add_u32 v{36+i}, s48, v{28+i}")
    for i in range(4):
        e(f"ds_read_b32 v{36+i}, v{36+i}")
    e(f"v_mov_b32 v69, {P_STAGE}")
    e("s_waitcnt lgkmcnt(0)")
    for i in range(4):
        e(f"v_add_u32 v{32+i}, v{32+i}, v{36+i}\nv_mad_u32_u24 v{32+i}, v{32+i}, 12, v69")
    if o.ppos == 2:
        e("v_and_b32 v53, 7, v2\nv_lshl_add_u32 v53, v53, 2, v3\nv_lshl_add_u32 v53, v53, 3, s14")
        vrow(54, 53, 55)
        e("v_add_u32 v54, s75, v54")
    e("s_waitcnt vmcnt(3)")
    for i in range(4):
        e(f"v_cmp_le_u32 vcc, {o.split}, v{12+i}\nv_lshl_or_b32 v{48+i}, v{8+i}, 17, v{12+i}\nv_or_b32 v{48+i}, s51, v{48+i}\nv_or_b32 v52, 0x10000, v{48+i}\nv_cndmask_b32 v{48+i}, v{48+i}, v52, vcc")
        e(f"ds_write_b32 v{32+i}, v{48+i} offset:8")
    e("s_waitcnt vmcnt(0)")
    stamp(e, o, 3)
    for i in range(4):
        half(e, 36, 16 + i // 2, i % 2)
        for j in range(3):
            n = 3 * i + j
            half(e, 37 + j, 20 + n // 2, n % 2)
        for j in range(3):
            e(f"v_mul_f32 v{37+j}, v36, v{37+j}")
        e(f"v_cvt_pk_bf16_f32 v{40+2*i}, v36, v37\nv_cvt_pk_bf16_f32 v{41+2*i}, v38, v39")
        e(f"ds_write2_b32 v{32+i}, v{40+2*i}, v{41+2*i} offset0:0 offset1:1")
        e(f"v_alignbit_b32 v{12+i}, v{41+2*i}, v{48+i}, 31\nv_bitop3_b32 v52, v{48+i}, v{41+2*i}, 1 bitop3:0xbe\nv_xad_u32 v{12+i}, v{12+i}, v{40+2*i}, v{48+i}\nv_mul_lo_u32 v{12+i}, v{12+i}, v52\nds_add_u32 v{28+i}, v{12+i} offset:1024")
    e("s_mov_b64 exec, -1")
    e(f"v_add_u32 v5, {P_STAGE}, v68\nv_add_u32 v4, s49, v68\nv_add_u32 v6, 10240, v4\nv_add_u32 v7, 20480, v4")
    e("s_cmp_lt_u32 s14, 2\ns_cbranch_scc1 L_pub")
    e.sec("aux")
    e("L_pub:\ns_cmp_eq_u32 s14, 0\ns_cbranch_scc1 L_pub0")
    e("v_mov_b32 v56, v58\nv_mov_b32 v57, v59\nv_mov_b32 v60, v62\nv_mov_b32 v61, v63\nv_add_u32 v26, 8, v26")
    e("L_pub0:")
    for i in range(2):
        e(f"v_lshl_or_b32 v{16+2*i}, v{56+i}, 12, v{60+i}\nv_or_b32 v{16+2*i}, s74, v{16+2*i}")
    e("v_mov_b32 v20, s2")
    vrow(22, 20, 21)
    e(f"v_and_b32 v21, {128 // TS - 1}, v68\nv_sub_u32 v20, v68, v21\nv_mad_u32_u24 v20, v20, {TS}, v21")
    e(f"v_add_u32 v22, v22, v20\nv_add_u32 v22, {TAB_OFF}, v22")
    RD = "ds_read_b128 v[32:35], v5\nds_read_b128 v[8:11], v5 offset:10240\nds_read_b128 v[12:15], v5 offset:20480"
    e("s_waitcnt lgkmcnt(0)\ns_barrier")
    e("ds_read_b64 v[20:21], v26 offset:1024\n" + RD + "\ns_waitcnt lgkmcnt(3)\nv_add_u32 v17, s73, v20\nv_add_u32 v19, s73, v21")
    e("global_store_dwordx4 v22, v[16:19], s[8:9] sc1\ns_branch L_pubd")
    e.sec("head")
    e("s_waitcnt lgkmcnt(0)\ns_barrier")
    stamp(e, o, 4)
    e(RD + "\nL_pubd:")
    if o.ppos == 2:
        e("s_cmp_ge_u32 s14, 8\ns_cbranch_scc1 L_np")
        e("s_mov_b32 exec_lo, 0x00ff00ff\ns_mov_b32 exec_hi, 0x00ff00ff\nglobal_load_dwordx2 v[66:67], v54, s[8:9] sc1\ns_mov_b64 exec, -1\nL_np:")
    e("s_waitcnt lgkmcnt(2)\nglobal_store_dwordx4 v4, v[32:35], s[8:9] sc1")
    e("s_waitcnt lgkmcnt(1)\nglobal_store_dwordx4 v6, v[8:11], s[8:9] sc1")
    if o.trim:
        e("v_cmp_gt_u32 vcc, 600, v0\ns_and_b64 exec, exec, vcc")
    e("s_waitcnt lgkmcnt(0)\nglobal_store_dwordx4 v7, v[12:15], s[8:9] sc1")
    if o.trim:
        e("s_mov_b64 exec, -1")
    e("s_cmp_ge_u32 s14, 8\ns_cbranch_scc1 L_p89")
    e("v_and_b32 v28, 7, v2\nv_lshl_add_u32 v28, v28, 2, v3\nv_lshl_add_u32 v28, v28, 3, s14")
    vrow(30, 28, 29)
    e("v_add_u32 v30, s75, v30")
    e(f"v_lshlrev_b32 v69, 7, v28\nv_add_u32 v69, {FLAG_OFF}, v69")
    if o.w1new:
        e(f"v_mul_u32_u24 v64, {REC_STRIDE}, v28\nv_lshrrev_b32 v65, 3, v2\nv_add_u32 v65, 16, v65\nv_mad_u32_u24 v64, v65, 12, v64")
    e(f"v_lshl_add_u32 v28, v3, 3, s14\nv_mul_u32_u24 v28, {REC_STRIDE}, v28\nv_mul_u32_u24 v29, 12, v2\nv_add_u32 v31, v28, v29")
    e(f"s_mov_b32 s68, s8\ns_mov_b32 s69, s9\ns_mov_b32 s70, {TAB_OFF}\ns_mov_b32 s71, 0x20000")
    for i in range(o.zmid, 96 - o.zlate):
        e(f"v_mov_b32 v{VB+i}, 0")
    e("v_add_u32 v26, 16, v2")
    if o.xpos[0] == "C" and o.xl:
        e("; speed only: addresses of x lines to touch ahead of the gather")
        NCW = 0 if (o.sx or o.p1 or o.n1) else 5 if o.xlate else 15
        e(f"s_lshl_b32 s48, s2, 3\ns_add_u32 s48, s48, s14\ns_mul_i32 s48, s48, {NCW}\nv_add_u32 v27, s48, v1")
        e(f"v_cmp_gt_u32 vcc, 10000, v27\nv_mov_b32 v28, {(HO - 2560000) & 0xffffffff}\nv_mov_b32 v29, 2560000\nv_cndmask_b32 v28, v28, v29, vcc")
        e("s_and_b32 s48, s2, 7\ns_mul_i32 s48, s48, 5\ns_sub_u32 s48, s48, 16\nv_add_u32 v29, s48, v1\nv_subrev_u32 v36, 40, v29\nv_min_u32 v29, v29, v36")
        e("s_and_b32 s48, s2, 0xf8\ns_add_u32 s48, s48, s14\ns_mul_i32 s48, s48, 40\nv_add_u32 v29, s48, v29")
        e("v_cmp_gt_u32 vcc, 16, v1\ns_nop 1\nv_cndmask_b32 v27, v29, v27, vcc\nv_cndmask_b32 v28, 0, v28, vcc")
        e(f"v_lshrrev_b32 v29, 1, v27\nv_lshl_add_u32 v28, v29, 9, v28\nv_and_b32 v27, 1, v27\nv_lshl_add_u32 v27, v27, {8 if o.hsp else 7}, v28")
        e(f"s_mov_b32 s48, {((((1 << o.xl) - 1) << 16) | ((1 << NCW) - 1)) & 0xffffffff}\ns_mov_b32 s49, {(((1 << o.xl) - 1) << 16) >> 32}\nv_mov_b32 v29, 0x40000000\nv_cndmask_b32 v27, v29, v27, s[48:49]")
    elif o.xpos[0] == "C":
        e("s_lshl_b32 s48, s2, 3\ns_add_u32 s48, s48, s14\ns_mul_i32 s48, s48, 2560\nv_lshl_add_u32 v27, v1, 7, s48")
        e("v_cmp_gt_u32 vcc, 20, v1\nv_mov_b32 v29, 0x40000000\ns_nop 0\nv_cndmask_b32 v27, v29, v27, vcc")
    e("v_and_b32 v20, 3, v2\nv_mul_u32_u24 v20, 0x5555, v20")
    e("v_lshl_add_u32 v21, v3, 5, v2")
    e("v_mov_b32 v22, 1\nv_mov_b32 v23, 4")
    e("v_lshlrev_b32 v16, 4, v2")
    if o.hsp:
        e("v_and_b32 v17, 8, v2\nv_lshl_add_u32 v16, v17, 4, v16")
    e("v_mov_b32 v17, 512")
    e("v_lshlrev_b32 v18, 2, v3\nv_lshl_add_u32 v18, v2, 4, v18")
    e("v_lshrrev_b32 v19, 1, v3\nv_lshlrev_b32 v19, 5, v19\nv_and_b32 v24, 1, v3\nv_lshl_add_u32 v19, v24, 4, v19")
    e(f"v_lshrrev_b32 v24, 2, v2\nv_lshl_add_u32 v19, v24, 1, v19\nv_add_u32 v19, {COFF}, v19")
    if o.adpp:
        e("v_and_b32 v24, 1, v2\nv_lshl_add_u32 v19, v24, 6, v19\nv_and_b32 v24, 2, v2\nv_lshl_add_u32 v19, v24, 2, v19")
    e(f"s_lshl_b32 s50, s12, 3\ns_sub_u32 s50, {L_CNT}, s50\ns_lshr_b32 s48, s51, 14\ns_sub_u32 s50, s50, s48")
    e(f"v_mov_b32 v24, 0x40000000\nv_mov_b32 v25, {KEYLIM}\ns_mov_b32 s59, {L_KEY}")
    if o.eplate:
        e("s_waitcnt lgkmcnt(0)")
        tag()
    HALF = "s_mov_b32 exec_lo, 0x00ff00ff\ns_mov_b32 exec_hi, 0x00ff00ff"
    POLL = "global_load_dwordx2 v[6:7], v30, s[8:9] sc1"
    e("s_mov_b32 s72, 0\ns_mov_b32 s66, 0\ns_mov_b32 s57, 0\ns_mov_b64 s[52:53], 0\nv_mov_b32 v7, s73")
    e("s_waitcnt vmcnt(0)")
    stamp(e, o, 5)
    if o.ppos == 3:
        e("s_barrier")
    e(HALF + "\n" + POLL)
    if o.zmid:
        e("s_mov_b64 exec, -1")
        for i in range(o.zmid):
            e(f"v_mov_b32 v{VB+i}, 0")
        e(HALF)
    if o.ppos == 1:
        e("s_barrier")
    e("L_tpoll:")
    e("s_waitcnt vmcnt(0)")
    e("v_and_b32 v4, 0xff000000, v6\nv_cmp_ne_u32 vcc, s74, v4\ns_cmp_eq_u64 vcc, 0\ns_cbranch_scc1 L_tready")
    e(f"s_sleep {o.tsleep}\ns_mov_b64 exec, vcc\n" + POLL)
    e("s_add_u32 s72, s72, 1\ns_cmp_lt_u32 s72, 0x80000\ns_cbranch_scc1 L_tpoll\ns_endpgm")
    e("L_tready:")
    e("s_mov_b64 exec, -1")
    e("v_mov_b32_dpp v6, v6 row_shr:8 row_mask:0xf bank_mask:0xc")
    e("v_and_b32 v5, 0xfff, v6\nv_bfe_u32 v4, v6, 12, 12\nv_mul_u32_u24 v5, 12, v5")
    def rank(r):
        e(f"v_bfe_u32 v15, v{r+2}, 16, 1\nv_mad_u32_u16 v{r+3}, v{r+2}, v23, s50 op_sel:[1,0,0,0]\nv_lshl_add_u32 v15, v15, 3, -4")
        e(f"ds_add_rtn_u32 v{r+3}, v{r+3}, v15")
    def place(r):
        e(f"v_med3_u32 v{r+3}, v{r+3}, s59, v25\nv_lshlrev_b32 v8, 1, v{r+3}")
        e(f"ds_write_b32 v{r+3}, v{r+2}")
        e(f"ds_write_b64 v8, v[{r}:{r+1}] offset:{COFF}")
    XP = "buffer_load_dword v167, v27, s[4:7], 0 offen"
    for i in range(96 - o.zlate, 96):
        e(f"v_mov_b32 v{VB+i}, 0")
    e("v_sub_u32 v14, v4, v65\nv_add_u32 v68, v5, v64\nv_mov_b32 v29, v31\ns_mov_b32 s51, 0")
    e("v_cmp_lt_u32 vcc, 32, v4\ns_cmp_lg_u64 vcc, 0\ns_cbranch_scc1 L_long")
    e("L_load:")
    stamp(e, o, 6)
    for r in range(8):
        e(f"v_cmp_lt_i32 s[{32+2*r}:{33+2*r}], {2*r}, v14\ns_and_b64 exec, exec, s[{32+2*r}:{33+2*r}]\ns_cbranch_scc0 L_x1")
        e(f"global_load_dwordx3 v[{VB+4*r}:{VB+2+4*r}], v68, s[8:9] offset:{24*r} sc1\ns_mov_b32 s51, {r+1}")
    e("L_x1:\ns_mov_b64 exec, -1")
    for i in range(8):
        e(f"v_mov_b32_dpp v9, v4 row_newbcast:{i} row_mask:0xf bank_mask:0xf")
        e(f"v_cmp_lt_u32 s[{16+2*i}:{17+2*i}], v2, v9")
        e(f"v_add_u32_dpp v{10+i%2}, v5, v29 row_newbcast:{i} row_mask:0xf bank_mask:0xf")
        e(f"v_add_u32 v29, {32*REC_STRIDE}, v29")
        e(f"v_cndmask_b32 v{10+i%2}, v24, v{10+i%2}, s[{16+2*i}:{17+2*i}]")
        e(f"buffer_load_dwordx3 v[{32+4*i}:{34+4*i}], v{10+i%2}, s[68:71], 0 offen sc1")
    def some(f, lo, hi):
        for i in range(lo, hi):
            e(f"s_mov_b64 exec, s[{16+2*i}:{17+2*i}]")
            f(32 + 4 * i)
    def extra(f, lbl):
        for r in range(8):
            e(f"s_cmp_le_u32 s51, {r}\ns_cbranch_scc1 {lbl}\ns_mov_b64 exec, s[{32+2*r}:{33+2*r}]")
            f(VB + 4 * r)
        e(f"{lbl}:")
    def hsh(r, acc=7):
        e(f"v_alignbit_b32 v6, v{r+1}, v{r+2}, 31\nv_bitop3_b32 v9, v{r+2}, v{r+1}, 1 bitop3:0xbe\nv_xad_u32 v6, v6, v{r}, v{r+2}\nv_mul_lo_u32 v6, v6, v9\nv_sub_u32 v{acc}, v{acc}, v6")
    AD = [12, 13, 22, 26, 28, 66, 67, 70]
    def prerank(i):
        r = 32 + 4 * i
        e(f"v_bfe_u32 v{AD[i]}, v{r+2}, 16, 1\nv_mad_u32_u16 v{r+3}, v{r+2}, v23, s50 op_sel:[1,0,0,0]\nv_lshl_add_u32 v{AD[i]}, v{AD[i]}, 3, -4")
    e("s_waitcnt vmcnt(8)")
    e("v_subrev_u32 v7, s73, v7")
    extra(hsh, "L_x4")
    e("s_mov_b64 exec, -1")
    def verify(acc, lbl, ff):
        for sh in (1, 2, 4, 8):
            e(f"v_add_u32_dpp v{acc}, v{acc}, v{acc} row_shr:{sh} row_mask:0xf bank_mask:0xf\ns_nop 1")
        e(f"v_add_u32_dpp v{acc}, v{acc}, v{acc} row_bcast:15 row_mask:0xa bank_mask:0xf\ns_nop 1")
        e(f"v_add_u32_dpp v{acc}, v{acc}, v{acc} row_bcast:31 row_mask:0xc bank_mask:0xf\ns_nop 0")
        e(f"v_readlane_b32 s48, v{acc}, 63")
        if o.forcefail & ff:
            e("s_or_b32 s48, s48, 1")
        e(f"s_andn2_b32 s48, s48, s66\ns_cbranch_scc1 {lbl}")
    radd = lambda r: e(f"ds_add_rtn_u32 v{r+3}, v{r+3}, v{AD[(r - 32) // 4]}")
    if o.halves:
        e("v_mov_b32 v71, 0\ns_mov_b32 exec_lo, 0x0f0f0f0f\ns_mov_b32 exec_hi, 0x0f0f0f0f\nv_swap_b32 v71, v7\ns_mov_b64 exec, -1")
        for q in range(4):
            e(f"s_andn2_b64 s[{16+2*q}:{17+2*q}], s[{16+2*q}:{17+2*q}], s[52:53]")
        for i in range(8):
            e(f"s_waitcnt vmcnt({7 - i + (1 if i > o.xat else 0)})")
            if i == 7:
                stamp(e, o, 7)
            if i == o.xat and o.xpos == "C2":
                if o.xold:
                    assert o.xat == 7
                    e("s_cmp_ge_u32 s14, 4\ns_cbranch_scc1 L_nxp\n" + XP)
                    e("v_add_u32 v10, 40960, v27\ns_mov_b64 exec, 0xffff\nv_add_u32 v10, 5120, v27\ns_mov_b64 exec, -1\n" + XP.replace("v27", "v10") + "\nL_nxp:")
                else:
                    e(XP)
            hsh(32 + 4 * i, 71 if i < 4 else 7)
            prerank(i)
            if i == 3:
                verify(71, "L_retry", 1)
                some(radd, 0, 4)
                e("s_mov_b64 exec, -1")
            if i == 4:
                e("s_waitcnt lgkmcnt(0)")
                some(place, 0, 4)
                e("s_mov_b64 exec, -1\ns_mov_b64 s[52:53], -1")
        verify(7, "L_retry", 2)
        some(radd, 4, 8)
        extra(rank, "L_x2")
        e("s_waitcnt lgkmcnt(0)")
        some(place, 4, 8)
        extra(place, "L_x3")
    else:
        for i in range(8):
            e(f"s_waitcnt vmcnt({7-i})")
            if i == 7:
                stamp(e, o, 7)
                if o.xpos == "C2":
                    e(XP)
            hsh(32 + 4 * i)
            if o.pre and i < 7:
                prerank(i)
        if o.pre:
            prerank(7)
        else:
            e("s_nop 1")
        for sh in (1, 2, 4, 8):
            e(f"v_add_u32_dpp v7, v7, v7 row_shr:{sh} row_mask:0xf bank_mask:0xf\ns_nop 1")
        e("v_add_u32_dpp v7, v7, v7 row_bcast:15 row_mask:0xa bank_mask:0xf\ns_nop 1")
        e("v_add_u32_dpp v7, v7, v7 row_bcast:31 row_mask:0xc bank_mask:0xf\ns_nop 0")
        e("v_readlane_b32 s48, v7, 63")
        if o.forcefail:
            e("s_or_b32 s48, s48, 1")
        e("s_andn2_b32 s48, s48, s66\ns_cbranch_scc1 L_retry")
        if o.pre:
            some(lambda r: e(f"ds_add_rtn_u32 v{r+3}, v{r+3}, v{AD[(r - 32) // 4]}"), 0, 8)
        else:
            some(rank, 0, 8)
        extra(rank, "L_x2")
        e("s_waitcnt lgkmcnt(0)")
        some(place, 0, 8)
        extra(place, "L_x3")
    e.sec("cold")
    e("L_cold:")
    e("L_retry:\ns_waitcnt vmcnt(0)")
    if o.stamp:
        e("s_add_u32 s72, s72, 100")
    e(f"s_add_u32 s57, s57, 1\ns_cmp_le_u32 s57, {o.retry}\ns_cbranch_scc1 L_again\ns_branch L_flagwait")
    e("L_long:\ns_cmp_eq_u32 s66, 0\ns_cbranch_scc1 L_flagwait")
    e(f"v_mov_b32 v9, 0\ns_mov_b64 exec, vcc\nds_max_u32 v9, v4 offset:{C_MAX}\ns_mov_b64 exec, -1\ns_branch L_load")
    e("L_flagwait:")
    if o.stamp:
        e("s_add_u32 s72, s72, 100")
    e("s_mov_b32 s58, 0\ns_mov_b32 exec_lo, 0x00ff00ff\ns_mov_b32 exec_hi, 0x00ff00ff")
    e("L_fw:\nglobal_load_dwordx2 v[12:13], v69, s[8:9] sc1\ns_waitcnt vmcnt(0)")
    e("v_not_b32 v13, v13\nv_cmp_ne_u32 vcc, s73, v12\nv_cmp_ne_u32 s[48:49], s73, v13\ns_or_b64 vcc, vcc, s[48:49]\ns_cbranch_scc0 L_fok")
    e("s_sleep 2\ns_mov_b64 exec, vcc\ns_add_u32 s58, s58, 1\ns_cmp_lt_u32 s58, 0x80000\ns_cbranch_scc1 L_fw\ns_endpgm")
    e("L_fok:\ns_mov_b32 s66, -1\nL_again:\ns_mov_b64 exec, -1\nv_mov_b32 v7, s73")
    for i in range(32):
        e(f"v_mov_b32 v{VB+i}, 0")
    e(HALF + "\n" + POLL + "\ns_branch L_tpoll")
    e.sec("head")
    if o.xpos == "C3":
        e("s_mov_b64 exec, -1\n" + XP)
    e("L_placed:")
    e("s_mov_b64 exec, -1")
    e(f"v_lshlrev_b32 v8, 3, v1\nv_mul_u32_u24 v9, {KSTR}, v1\nv_add_u32 v9, {L_KEY + MID}, v9")
    e("s_waitcnt lgkmcnt(0)\ns_barrier")
    stamp(e, o, 8)
    if o.stamp:
        e("s_memtime s[76:77]\ns_waitcnt lgkmcnt(0)\ns_mov_b32 s98, s76")
    def check_read():
        e(f"ds_read_b64 v[10:11], v8 offset:{L_CNT}\ns_waitcnt lgkmcnt(0)")
        e(f"v_readlane_b32 s65, v10, {C_MAX // 8}\nv_add_u32 v10, 4, v10\nv_sub_u32 v15, v11, v10")
    def check_test(lbl, lbl_restart):
        e(f"s_cmp_lg_u32 s15, 0\ns_cbranch_scc1 {lbl}_ok")
        e(f"v_sub_u32 v11, v11, v9\nv_sub_u32 v9, v9, v10\nv_max_u32 v9, v9, v11")
        e(f"v_cmp_lt_u32 vcc, {4*CL}, v9\nv_mov_b32 v9, 512\nv_cmp_lt_u32 s[48:49], v9, v15\ns_or_b64 vcc, vcc, s[48:49]")
        e("s_and_b32 vcc_hi, vcc_hi, 0xff\ns_or_b32 s48, vcc_lo, vcc_hi\ns_or_b32 s48, s48, s65")
        e(f"s_cmp_eq_u32 s48, 0\ns_cbranch_scc1 {lbl}_ok")
        e("s_mov_b32 s15, 1\ns_max_u32 s64, s65, 32\ns_min_u32 s64, s64, 2560")
        e(f"s_waitcnt vmcnt(0) lgkmcnt(0)\ns_barrier\ns_branch {lbl_restart}")
        e(f"{lbl}_ok:")
    def check_overflow(lbl, lbl_restart):
        check_read()
        check_test(lbl, lbl_restart)
    SC, SL, STB, SX, SS = 52, 79, 16, 21, 26
    NSTEP = 8 if o.nmap == 0 else 4
    KEYR = lambda k, i: 2 + 2 * k + i // 16
    AR = [12, 24, 28]
    ACC = lambda k: 32 + 8 * k
    BUF = [VB, VB + 48]
    def scale(r):
        e(f"v_mul_u32_u24_sdwa v{r}, v{r}, v17 dst_sel:DWORD dst_unused:UNUSED_PAD src0_sel:WORD_0 src1_sel:DWORD")
    def load(k, i, dst, hs, tmp=(17, 18)):
        e(f"v_add_u32_dpp v{tmp[i%2]}, v{KEYR(k, i)}, v16 row_newbcast:{i%16} row_mask:0xf bank_mask:0xf")
        e(f"buffer_load_dwordx4 v[{dst}:{dst+3}], v{tmp[i%2]}, s[4:7], {hs} offen")
    def expand(a):
        if o.adpp:
            for r in range(4):
                e(f"v_mov_b32_dpp v{a+r}, v{a+3} quad_perm:[{r},{r},{r},{r}] row_mask:0xf bank_mask:0xf")
    def aread(G, a):
        if o.adpp:
            e(f"ds_read_u16 v{a+3}, v22 offset:{128*G}")
            return
        for r in range(4):
            e(f"ds_read_u16 v{a+r}, v22 offset:{128*G + 64*(r%2) + 8*(r//2)}")
    def swaps(q):
        if o.exp & 2:
            return
        e(f"v_swap_b32 v{q+2}, v{q+8}\nv_swap_b32 v{q+3}, v{q+9}\nv_swap_b32 v{q+6}, v{q+12}\nv_swap_b32 v{q+7}, v{q+13}")
    def mm(k, a, q):
        if o.exp & 1:
            return
        e(f"v_smfmac_f32_16x16x64_bf16 v[{ACC(k)}:{ACC(k)+3}], v[{a}:{a+3}], v[{q}:{q+7}], v20")
        e(f"v_smfmac_f32_16x16x64_bf16 v[{ACC(k)+4}:{ACC(k)+7}], v[{a}:{a+3}], v[{q+8}:{q+15}], v20")
    def flush_l(k):
        a = ACC(k)
        l = [f"v_xor_b32 v23, s{SX+k}, v21", f"v_lshl_add_u32 v23, v23, 4, s{STB+k}"]
        l += [f"v_cvt_pk_bf16_f32 v{a+d}, v{a+2*d}, v{a+2*d+1}" for d in range(4)]
        l += [f"ds_write_b128 v23, v[{a}:{a+3}]", f"v_mov_b32 v{a+4}, s{SS+k}", f"s_mov_b64 exec, 1\nds_inc_u32 v{a+4}, v19\ns_mov_b64 exec, -1"]
        l += [f"v_mov_b32 v{a+(i+5)%8}, 0" for i in range(8)]
        return l
    def flush(k):
        e("\n".join(flush_l(k)))
    def aread_l(G, a):
        if o.exp & 4:
            return []
        return [f"ds_read_u16 v{a+r}, v22 offset:{128*G + 64*(r%2) + 8*(r//2)}" for r in range(4)]
    def others(t, sfx):
        sp, k = divmod(t, 5)
        if o.adpp:
            l = [f"v_add_u32 v22, s{SL+k}, v19"] + [f"ds_read_u16 v{a+3}, v22 offset:{128*G}" for G, a in zip((2 * sp, 2 * sp + 1, 4 if sp else 5), AR)]
            return l + (["s_nop 5"] + flush_l(k - 1) if t >= 6 else [])
        l = [f"v_add_u32 v22, s{SL+k}, v19"] + aread_l(2 * sp, AR[0]) + aread_l(2 * sp + 1, AR[1])
        l.append(f"s_cmp_le_u32 s{SC+k}, {256 if sp else 320}\ns_cbranch_scc1 L_na{t}{sfx}\n" + "\n".join(aread_l(4 if sp else 5, AR[2])) + f"\nL_na{t}{sfx}:"
                 if sp or sfx else f"s_cmp_gt_u32 s{SC+k}, 320\ns_cbranch_scc1 L_xa{t}\nL_na{t}:")
        if t >= 6:
            l += flush_l(k - 1)
        return l
    check_read()
    GRP = [0, 1, 4, 2, 3] if o.tord else [0, 1, 2, 3, 4]
    e("s_mov_b32 s57, s14\ns_add_u32 s58, s14, 8")
    for k in range(2):
        e(f"v_readlane_b32 s{SL+k}, v10, s{57+k}\nv_readlane_b32 s{SC+k}, v15, s{57+k}\ns_nop 0")
        e(f"v_add_u32 v{12+k}, s{SL+k}, v18")
        e(f"ds_read2st64_b32 v[{2+2*k}:{3+2*k}], v{12+k} offset0:0 offset1:1")
    check_test("L_g", "L_slow_load")
    e("s_waitcnt lgkmcnt(1)")
    scale(2); scale(3)
    e(f"s_mov_b32 s84, 0\ns_mov_b32 s85, {HO}")
    if o.prio:
        e("s_setprio 3")
    for i in range(8):
        load(0, i, BUF[0] + 4 * i, "0", tmp=(13, 14))
    e(f"s_cmp_le_u32 s{SC}, 320\ns_cbranch_scc1 L_nx0")
    for i in range(4):
        load(0, 20 + i, BUF[0] + 32 + 4 * i, "0", tmp=(13, 14))
    e("L_nx0:")
    if o.bal:
        e("; nodes 16..39 go to the waves by size so that the totals match (fixed order when working in rounds)")
        e("s_cmp_eq_u32 s15, 0\ns_cselect_b32 s48, -1, 0\nv_and_b32 v27, s48, v15\nv_lshl_or_b32 v24, v27, 6, v1\nv_mov_b32 v25, 0")
        e("v_add_u32_dpp v26, v27, v27 row_shl:8 row_mask:0xf bank_mask:0xf")
        for j in range(24):
            e(f"v_readlane_b32 s{16+j}, v24, {16+j}")
        e("v_lshl_or_b32 v26, v26, 3, v1")
        for j in range(0, 24, 3):
            for d in range(3):
                e(f"v_cmp_gt_u32 s[{40+2*d}:{41+2*d}], s{16+j+d}, v24")
            for d in range(3):
                e(f"v_addc_co_u32 v25, vcc, 0, v25, s[{40+2*d}:{41+2*d}]")
        e("v_readlane_b32 s48, v26, s14\ns_nop 1\nv_cmp_gt_u32 vcc, s48, v26\ns_and_b32 s48, vcc_lo, 0xff\ns_bcnt1_i32_b32 s48, s48")
        for k in map(int, str(o.kord)):
            e(f"v_cmp_eq_u32 vcc, s48, v25\ns_and_b32 vcc_lo, vcc_lo, 0xffff0000\ns_and_b32 vcc_hi, vcc_hi, 0xff\ns_ff1_i32_b64 s{38+k}, vcc\ns_add_u32 s48, s48, 8")
    else:
        for k in range(2, 5):
            e(f"s_add_u32 s{38+k}, s14, {8*k}")
    e(f"s_lshl_b32 s48, s14, 2\nv_mov_b32 v24, s48")
    for k in range(2, 5):
        e(f"v_readlane_b32 s{SL+k}, v10, s{38+k}\nv_readlane_b32 s{SC+k}, v15, s{38+k}\ns_lshl_b32 s48, s{38+k}, 9")
        e(f"v_add_u32 v{10+k}, s{SL+k}, v18\nv_mov_b32 v{23+k}, s48")
    for k in range(2, 5):
        e(f"ds_read2st64_b32 v[{2+2*k}:{3+2*k}], v{10+k} offset0:0 offset1:1")
    e("s_mov_b64 exec, 1")
    for k in range(2, 5):
        e(f"ds_write_b32 v24, v{23+k} offset:{C_PERM + 32*GRP[k]}")
    e("s_mov_b64 exec, -1")
    for i in range(40):
        e(f"v_mov_b32 v{32+i}, 0")
    for k in range(5):
        e(f"s_lshl_b32 s{SL+k}, s{SL+k}, 1\ns_lshl_b32 s{STB+k}, s14, 11\ns_add_u32 s{STB+k}, s{STB+k}, {L_T + 16384*GRP[k]}\ns_add_u32 s{SX+k}, s14, {8*(GRP[k] & 1)}")
        e(f"s_mov_b32 s{SS+k}, {C_STAGE + 4*(GRP[k] >> 1)}")
    e(f"s_mov_b32 s86, s{SC}")
    e("s_waitcnt lgkmcnt(0)")
    for r in range(4, 12):
        scale(r)
    e("s_branch L_hloop")
    e.sec("loop")
    e("L_late:\nL_hloop:")
    for t in range(10):
        sp, k = divmod(t, 5)
        nsp, nk = divmod((t + 1) % 10, 5)
        cb, nb = BUF[t % 2], BUF[(t + 1) % 2]
        oth = others(t, "")
        if not o.lfirst:
            e("\n".join(oth)); oth = []
        def some(i, n):
            e("\n".join(oth[len(oth) * i // n:len(oth) * (i + 1) // n]))
        if o.po:
            a_, b_ = o.po[1 + t], o.py[1 + t]
            if a_ == b_:
                e(f"s_setprio {a_}")
            else:
                e(f"s_setprio {b_}\ns_cmp_ge_u32 s14, 4\ns_cbranch_scc1 L_pr{t}\ns_setprio {a_}\nL_pr{t}:")
        elif o.prio >= 2:
            pat = {2: [3, 2, 1, 0, 3, 2, 1, 0, 1, 0], 3: [3, 3, 2, 1, 0, 3, 3, 2, 1, 0], 4: [3, 3, 3, 2, 2, 2, 1, 1, 0, 0], 5: [2, 1, 0, 3, 2, 1, 0, 2, 1, 0], 6: [3, 3, 3, 3, 2, 2, 1, 1, 0, 3], 7: [3, 3, 2, 2, 2, 1, 1, 0, 0, 3], 8: [3, 3, 3, 3, 3, 3, 2, 1, 0, 3], 9: [2, 1, 0, 0, 3, 3, 2, 1, 0, 3], 10: [3, 2, 2, 1, 1, 1, 0, 0, 0, 3], 11: [3, 3, 3, 2, 2, 2, 2, 1, 0, 3], 12: [1, 0, 1, 0, 1, 3, 2, 1, 0, 2]}[o.prio]
            e(f"s_setprio {pat[t]}")
        if o.prio == 1 and t in (4, 9):
            e(f"s_cmp_eq_u32 s84, 0\ns_cbranch_scc1 L_pa{t}\ns_setprio 0\ns_branch L_pb{t}\nL_pa{t}:\ns_setprio {2 if t == 4 else 1}\nL_pb{t}:")
        cs = "s86" if t == 9 else f"s{SC+nk}"
        hs = "s85" if t == 9 else "s84"
        if nsp == 0:
            e(f"s_cmp_eq_u32 {cs}, 0\ns_cbranch_scc1 L_w{t}_0")
            for i in range(8):
                load(nk, i, nb + 4 * i, hs)
                if i < 6:
                    some(i, 6)
                if o.adpp and i == 5:
                    e("s_waitcnt lgkmcnt(0)"); expand(AR[0])
                if o.adpp and i == 6:
                    expand(AR[1])
            e(f"s_cmp_gt_u32 {cs}, 320\ns_cbranch_scc1 L_xl{t}")
            e("s_waitcnt vmcnt(8) lgkmcnt(0)")
        else:
            e(f"s_cmp_le_u32 {cs}, 128\ns_cbranch_scc1 L_w{t}_0")
            for i in range(5):
                load(nk, 8 + i, nb + 4 * i, hs)
                some(i, 5)
                if o.adpp and i == 3:
                    e("s_waitcnt lgkmcnt(0)"); expand(AR[0])
                if o.adpp and i == 4:
                    expand(AR[1])
            for i in range(5, 12):
                e(f"s_cmp_le_u32 {cs}, {16*(8+i)}\ns_cbranch_scc1 L_w{t}_{i}")
                load(nk, 8 + i, nb + 4 * i, hs)
            e(f"s_branch L_w{t}_12")
            for i in range(5, 12):
                e(f"L_w{t}_{i}:\ns_waitcnt vmcnt({i})")
            e(f"L_w{t}_12:\ns_waitcnt vmcnt(12) lgkmcnt(0)")
        e(f"L_go{t}:")
        swaps(cb); swaps(cb + 16)
        mm(k, AR[0], cb); mm(k, AR[1], cb + 16)
        if sp == 1:
            e(f"s_cmp_le_u32 s{SC+k}, 256\ns_cbranch_scc1 L_md{t}")
            expand(AR[2])
            swaps(cb + 32)
            e(f"s_cmp_gt_u32 s{SC+k}, 384\ns_nop 0")
            mm(k, AR[2], cb + 32)
            e(f"s_cbranch_scc1 L_more{t}")
            e(f"L_md{t}:")
        else:
            e(f"s_cmp_gt_u32 s{SC+k}, 320\ns_cbranch_scc1 L_xm{t}\nL_md{t}:")
        if o.tstamp:
            e(f"s_memrealtime s[76:77]\ns_mul_i32 s48, s14, 80\ns_lshr_b32 s49, s84, {7 if o.hsp else 8}\ns_mul_i32 s49, s49, 40\ns_add_u32 s48, s48, s49\ns_add_u32 s48, s48, {LDS + 4*t}\nv_mov_b32 v17, s48\ns_waitcnt lgkmcnt(0)\nv_mov_b32 v18, s76\nds_write_b32 v17, v18")
    if o.tail and o.tail2:
        fl = flush_l(4)
        e("s_cmp_lg_u32 s84, 0\ns_nop 7\n" + "\n".join(fl[:7]) + "\ns_cbranch_scc1 L_tdone\n" + "\n".join(fl[7:]))
    else:
        e("s_nop 8")
        flush(4)
        e("s_cmp_lg_u32 s84, 0\ns_cbranch_scc1 L_tdone")
    for k in range(5):
        e(f"s_add_u32 s{STB+k}, s{STB+k}, 256\ns_add_u32 s{SS+k}, s{SS+k}, 12")
    e(f"s_mov_b32 s84, {HO}\ns_mov_b32 s86, 0\ns_branch L_hloop")
    e("L_tdone:")
    if o.tail:
        e("s_waitcnt lgkmcnt(0)\ns_barrier")
    stamp(e, o, 9)
    if o.stamp:
        e("s_memtime s[76:77]\ns_waitcnt lgkmcnt(0)\ns_sub_u32 s99, s76, s98\ns_add_u32 s98, s72, 1")
    def adv_slow(lbl_round, lbl_done):
        e(f"s_cmp_eq_u32 s15, 0\ns_cbranch_scc1 {lbl_done}")
        e("s_add_u32 s61, s61, 1\ns_cmp_lt_u32 s61, 64\ns_cselect_b32 s48, 0, 16\ns_cselect_b32 s61, s61, 0\ns_add_u32 s60, s60, s48")
        e(f"s_cmp_ge_u32 s60, s64\ns_cbranch_scc1 {lbl_done}")
        e(f"s_waitcnt lgkmcnt(0)\ns_barrier\ns_branch {lbl_round}")
    adv_slow("L_slow_load", "L_gdone")
    e("L_gdone:")
    stamp_out(e, o)
    e("s_endpgm")
    for t in range(10):
        e(f"L_w{t}_0:")
        if o.lfirst:
            e("\n".join(others(t, "s")))
        if o.adpp:
            e("s_waitcnt lgkmcnt(0)"); expand(AR[0]); expand(AR[1])
        e(f"s_waitcnt vmcnt(0) lgkmcnt(0)\ns_branch L_go{t}")
    for t in range(10):
        sp, k = divmod(t, 5)
        nsp, nk = divmod((t + 1) % 10, 5)
        if sp == 0:
            if not o.adpp:
                e(f"L_xa{t}:")
                aread(5, AR[2])
                e(f"s_branch L_na{t}")
            e(f"L_xm{t}:")
            expand(AR[2])
            swaps(BUF[t % 2] + 32)
            e("s_nop 1")
            mm(k, AR[2], BUF[t % 2] + 32)
            e(f"s_branch L_md{t}")
        if nsp == 0:
            e(f"L_xl{t}:")
            for i in range(4):
                load(nk, 20 + i, BUF[(t + 1) % 2] + 32 + 4 * i, "s85" if t == 9 else "s84")
            e(f"s_waitcnt vmcnt(12) lgkmcnt(0)\ns_branch L_go{t}")
    e.sec("cold")
    for t in range(5, 10):
        k = t - 5
        cb = BUF[t % 2]
        e(f"L_more{t}:")
        for i in range(24, 32):
            e(f"s_cmp_le_u32 s{SC+k}, {16*i}\ns_cbranch_scc1 L_mi{t}")
            load(k, i, cb + 4 * (i - 24), "s84")
        e(f"L_mi{t}:")
        for G in range(6, 8):
            e(f"s_cmp_le_u32 s{SC+k}, {64*G}\ns_cbranch_scc1 L_mx{t}")
            aread(G, AR[0])
            e("s_waitcnt vmcnt(0) lgkmcnt(0)")
            expand(AR[0])
            swaps(cb + 16 * (G - 6))
            e("s_nop 1")
            mm(k, AR[0], cb + 16 * (G - 6))
        e(f"L_mx{t}:\ns_branch L_md{t}")
    e("L_slow_load:")
    e("s_barrier")
    e("v_and_b32 v2, 15, v0\nv_lshrrev_b32 v3, 4, v1\nv_mov_b32 v23, 4\nv_mov_b32 v17, 512\nv_lshlrev_b32 v18, 2, v3\nv_lshl_add_u32 v18, v2, 4, v18")
    e("s_cmp_ge_u32 s14, 1\ns_cbranch_scc1 L_placed")
    e("s_lshl_b32 s48, s61, 2\nv_add_u32 v6, s48, v3")
    vrow(7, 6, 8)
    e("v_add_u32 v7, s75, v7")
    e("global_load_dword v8, v7, s[8:9] sc1")
    e(f"v_mul_u32_u24 v6, {REC_STRIDE}, v6\nv_add_u32 v10, s60, v2\nv_mov_b32 v25, {KEYLIM}")
    e("s_waitcnt vmcnt(0)")
    e("v_bfe_u32 v9, v8, 12, 12\nv_and_b32 v8, 0xfff, v8\nv_add_u32 v8, v8, v10\nv_mul_u32_u24 v8, 12, v8\nv_add_u32 v35, v8, v6")
    e("v_cmp_lt_u32 vcc, v10, v9\ns_and_b64 exec, exec, vcc")
    e("s_cbranch_execz L_placed")
    e("global_load_dwordx3 v[32:34], v35, s[8:9] sc1\ns_waitcnt vmcnt(0)")
    rank(32)
    e("s_waitcnt lgkmcnt(0)")
    place(32)
    e("s_branch L_placed")

    e.sec("aux")
    e("L_p89:")
    assert not o.eplate
    e(f"s_lshl_b32 s48, s2, 7\ns_add_u32 s48, s48, {FLAG_OFF}\nv_mov_b32 v30, s48\nv_mov_b32 v48, s73\nv_not_b32 v49, v48")
    e("s_waitcnt vmcnt(0)")
    stamp(e, o, 5)
    e("s_barrier")
    e("s_cmp_lg_u32 s14, 8\ns_cbranch_scc1 L_gemm")
    e("s_mov_b64 exec, 1\nglobal_store_dwordx2 v30, v[48:49], s[8:9] sc1\ns_mov_b64 exec, -1")
    e("s_branch L_gemm")

    def init_cnt(vz, r):
        e(f"v_mul_u32_u24 v{r+1}, {2*KSTR}, v1\nv_add_u32 v{r}, {L_KEY + MID - 4}, v{r+1}\nv_add_u32 v{r+2}, {L_KEY + MID - 4 + KSTR}, v{r+1}\nv_add_u32 v{r+3}, {L_KEY + MID + KSTR}, v{r+1}\nv_add_u32 v{r+1}, {L_KEY + MID}, v{r+1}")
        e(f"v_cmp_gt_u32 vcc, 20, v1\nv_lshlrev_b32 {vz}, 4, v1\ns_nop 0")
        for q in range(r, r + 4):
            e(f"v_cndmask_b32 v{q}, 0, v{q}, vcc")
        e(f"ds_write_b128 {vz}, v[{r}:{r+3}]")
    e("L_helper:")
    zero_lists_all()
    common_consts()
    e("v_lshlrev_b32 v5, 4, v1")
    e("s_cmp_eq_u32 s14, 11\ns_cbranch_scc1 L_h11")
    e("s_waitcnt lgkmcnt(0)")
    if o.spf & 1:
        e("; speed only: first touch of the weights")
        e("s_lshr_b32 s48, s2, 3\ns_mul_i32 s49, s48, 768\ns_lshl_b32 s48, s48, 9")
        e("s_add_u32 s32, s26, s48\ns_addc_u32 s33, s27, 0\ns_add_u32 s34, s28, s49\ns_addc_u32 s35, s29, 0")
        for i in range(4):
            e(f"s_load_dword s87, s[32:33], {128*i}")
        for i in range(6):
            e(f"s_load_dword s87, s[34:35], {128*i}")
        e("s_load_dword s87, s[24:25], 0")
    e("s_barrier")
    for _ in range(o.wpos - 1):
        e("s_barrier")
    if o.wsl:
        e(f"s_sleep {o.wsl}")
    for k in range(20):
        if k % 4 == 0:
            e(f"v_add_u32 v6, {1024*(k % 16)}, v5")
        e(f"global_load_dwordx4 v[{72+4*k}:{75+4*k}], v6, {'s[26:27]' if k < 16 else 's[28:29]'} offset:{1024*(k%4)}")
    e(f"v_add_u32 v7, {P_W}, v5")
    e("s_branch L_h2")
    e("L_h11:")
    init_cnt("v12", 32)
    e("s_waitcnt lgkmcnt(0)")
    if o.spf & 4:
        e("; speed only: one touch per 2 MiB of x")
        for off in (0, 2 << 20, 4 << 20):
            e(f"s_mov_b32 s37, {off}\ns_load_dword s87, s[4:5], s37")
    if o.spf & 2:
        for base, offs in (("s[8:9]", [30720 + REC_STRIDE * 68 * i for i in range(4)] + [TAB_OFF + 2048]), ("s[4:5]", [0, 2 << 20, 4 << 20]), ("s[10:11]", [0, 2 << 20, 4 << 20])):
            for off in offs:
                e(f"s_mov_b32 s37, {off}\ns_load_dword s87, {base}, s37")
    e("s_barrier")
    for _ in range(o.wpos - 1):
        e("s_barrier")
    if o.wsl:
        e(f"s_sleep {o.wsl}")
    for k in range(20):
        if k % 4 == 0:
            e(f"v_add_u32 v6, {4096 + 1024*k}, v5")
        e(f"global_load_dwordx4 v[{72+4*k}:{75+4*k}], v6, s[28:29] offset:{1024*(k%4)}")
    e(f"v_add_u32 v7, {P_W + 20480}, v5")
    e("L_h2:")
    e("v_min_u32 v6, 624, v5")
    e("global_load_dwordx4 v[152:155], v6, s[24:25]")
    CPF2 = "v_add_u32 v70, L_late-L_pc, v70\nv_min_u32 v70, L_cold-L_pc, v70\nglobal_load_dword v4, v70, s[46:47]"
    if o.cpf and o.cpf2 == 1:
        e(CPF2)
    def xph():
        e("s_lshl_b32 s48, s2, 1\ns_add_u32 s48, s48, s14\ns_sub_u32 s48, s48, 10\ns_mul_i32 s48, s48, 10240\nv_lshlrev_b32 v30, 7, v1")
        e("buffer_load_dword v31, v30, s[4:7], s48 offen\ns_add_u32 s48, s48, 8192\ns_mov_b64 exec, 0xffff\nbuffer_load_dword v31, v30, s[4:7], s48 offen\ns_mov_b64 exec, -1")
    if o.xpos == "A":
        xph()
    if o.wpos < 2:
        e("s_barrier")
    e("s_waitcnt vmcnt(0)")
    if o.wlate and o.wpos < 3:
        e("s_barrier")
    for k in range(20):
        e(f"ds_write_b128 v7, v[{72+4*k}:{75+4*k}] offset:{1024*k}")
    e(f"v_add_u32 v7, {P_WR}, v5\nds_write_b128 v7, v[152:155]")
    if not o.wlate:
        e("s_waitcnt lgkmcnt(0)\ns_barrier")
    if o.cpf and o.cpf2 == 2:
        e(CPF2)

    e("; waves 8-11: wave j owns output channels 16j..16j+15 of all four blocks")
    e("L_gemm:")
    e("s_sub_u32 s51, s14, 8")
    e("v_and_b32 v9, 7, v2")
    for c in range(4):
        e(f"v_add_u32 v8, {4*c}, v3\nv_xor_b32 v8, v8, v2\nv_lshlrev_b32 v8, 4, v8\nv_lshl_add_u32 v8, v2, 11, v8\nv_add_u32 v{16+c}, {L_T}, v8")
        e(f"v_add_u32 v8, {4*c}, v3\nv_xor_b32 v8, v8, v9\nv_lshlrev_b32 v8, 4, v8\nv_lshl_add_u32 v8, v9, 11, v8\nv_add_u32 v{20+c}, {L_T + 65536}, v8")
    e(f"v_mul_u32_u24 v5, 528, v2\nv_lshl_add_u32 v5, v3, 3, v5\ns_lshl_b32 s48, s51, 5\ns_add_u32 s48, s48, {L_KEY}\nv_add_u32 v5, s48, v5")
    e(f"v_lshrrev_b32 v6, 5, v1\nv_lshlrev_b32 v6, 4, v6\nv_lshl_add_u32 v6, v1, 4, v6\nv_add_u32 v6, {L_KEY}, v6")
    e("v_lshlrev_b32 v7, 4, v1")
    e("s_mov_b32 s40, s10\ns_mov_b32 s41, s11\ns_add_u32 s42, s12, s13\ns_lshl_b32 s42, s42, 9\ns_mov_b32 s43, 0x20000\ns_lshl_b32 s44, s12, 9")
    e("v_mov_b32 v14, 0\nv_mov_b32 v12, 1\ns_mov_b32 s45, 0xbfb8aa3b")
    e(f"s_lshl_b32 s48, s51, 5\ns_add_u32 s48, s48, {P_W}")
    e("v_lshrrev_b32 v28, 2, v2\nv_lshl_add_u32 v28, v3, 3, v28\nv_lshlrev_b32 v28, 7, v28\nv_and_b32 v29, 3, v2\nv_lshl_add_u32 v28, v29, 3, v28\nv_add_u32 v28, s48, v28")
    e(f"v_lshlrev_b32 v29, 4, v3\nv_add_u32 v29, {P_WR}, v29")
    if o.wlate:
        assert o.ackgate
        e(("s_waitcnt vmcnt(0) lgkmcnt(0)" if o.ackgate == 1 else "s_waitcnt lgkmcnt(0)") + "\ns_barrier")
    for f in range(10):
        e(f"ds_read_b64_tr_b16 v[{VW+4*f}:{VW+1+4*f}], v28 offset:{4096*f}")
        e(f"ds_read_b64_tr_b16 v[{VW+2+4*f}:{VW+3+4*f}], v28 offset:{4096*f+512}")
        e(f"ds_read_b128 v[{VF+4*f}:{VF+3+4*f}], v29 offset:{64*f}")
    if o.ackgate and not o.wlate:
        e("s_waitcnt vmcnt(0)\ns_barrier")
    if o.xpos == "B":
        e("s_cmp_lt_u32 s14, 10\ns_cbranch_scc1 L_nxb")
        xph()
        e("L_nxb:")
    if o.pbar:
        e("s_barrier")
    def spf(ph, n, lbl, skip=0):
        if not n:
            return
        e("s_lshr_b32 s48, s2, 3\ns_lshl_b32 s48, s48, 2\ns_add_u32 s48, s48, s51\ns_min_u32 s48, s48, 124\ns_mul_i32 s48, s48, 20480")
        e(f"s_add_u32 s48, s48, {(ph & 1) * 2560000 + (ph >> 1) * 256}\ns_add_u32 s46, s4, s48\ns_addc_u32 s47, s5, 0")
        e(f"s_and_b32 s48, s2, 7\ns_mul_i32 s48, s48, 2560\ns_add_u32 s48, s48, {512 * skip}\ns_mov_b32 s49, {n}")
        e(f"{lbl}:\ns_cmp_ge_u32 s48, 20480\ns_cselect_b32 s39, 20480, 0\ns_sub_u32 s48, s48, s39\ns_add_u32 s36, s46, s48\ns_addc_u32 s37, s47, 0\ns_waitcnt lgkmcnt(11)")
        for i in range(4):
            e(f"s_load_dword s87, s[36:37], {64*i}")
        e(f"s_add_u32 s48, s48, 512\ns_sub_u32 s49, s49, 1\ns_cmp_lg_u32 s49, 0\ns_cbranch_scc1 {lbl}")
    if o.p0 or o.p1:
        e("s_waitcnt lgkmcnt(0)")
        spf(0, o.p0, "L_sr0"); spf(1, o.p1, "L_sr1")
    def wscale():
        for i in range(48):
            e(f"v_mov_b32 v{VO+i}, 0")
        e("s_waitcnt lgkmcnt(0)")
        for f in range(10):
            for d in range(4):
                half(e, 24, VW + 4 * f + d, 0); half(e, 25, VW + 4 * f + d, 1)
                half(e, 26, VF + 4 * f + d, 0); half(e, 27, VF + 4 * f + d, 1)
                e("v_mul_f32 v24, v24, v26\nv_mul_f32 v25, v25, v27")
                e(f"v_cvt_pk_bf16_f32 v{VW+4*f+d}, v24, v25")
        for d in range(8):
            e(f"v_xor_b32 v{VW+40+d}, 0x80008000, v{VW+32+d}")
    if o.wscale == 0:
        wscale()
    else:
        e("s_mov_b32 s66, 1")
    e.sec("cold")
    e("L_gnext:")
    e("v_mov_b32 v8, 0\nv_mov_b32 v9, 0\nv_mov_b32 v10, 0\nv_mov_b32 v11, 0")
    e("s_lshl_b32 s48, s51, 10\nv_lshl_add_u32 v13, v1, 4, s48\nv_add_u32 v15, 0x8000, v13")
    for k in range(18):
        e(f"ds_write_b128 {'v13' if k < 8 else 'v15'}, v[8:11] offset:{1024 + 4096*k - (0 if k < 8 else 32768)}")
    e("s_cmp_lg_u32 s51, 0\ns_cbranch_scc1 L_gn2")
    init_cnt("v13", 8)
    e("L_gn2:")
    e("s_waitcnt lgkmcnt(0)\ns_barrier\ns_branch L_gplaced")
    e.sec("aux")
    e("L_gplaced:")
    e(f"v_lshlrev_b32 v8, 3, v1\nv_mul_u32_u24 v9, {KSTR}, v1\nv_add_u32 v9, {L_KEY + MID}, v9")
    e("s_waitcnt lgkmcnt(0)\ns_barrier")
    check_overflow("L_m", "L_gnext")
    e("s_branch L_stages")
    e.sec("stages")
    e("L_stages:")
    if o.wscale:
        e("s_cmp_eq_u32 s66, 0\ns_cbranch_scc1 L_wdone")
        wscale()
        e("s_mov_b32 s66, 0\nL_wdone:")
    def xlate():
        e("s_lshl_b32 s48, s2, 2\ns_add_u32 s48, s48, s51\ns_mul_i32 s48, s48, 5120\ns_add_u32 s48, s48, 256")
        e("v_lshrrev_b32 v8, 1, v1\nv_lshlrev_b32 v8, 9, v8\nv_and_b32 v9, 1, v1\nv_lshl_add_u32 v8, v9, 7, v8")
        e("s_mov_b64 exec, 0xfffff\nbuffer_load_dword v4, v8, s[4:7], s48 offen\ns_mov_b64 exec, -1")
    if o.xlate == 1:
        xlate()
    if o.xlate == 7:
        e("; speed only: second row halves through the scalar cache")
        e("s_cmp_lg_u32 s15, 0\ns_cbranch_scc1 L_nsp")
        spf(1, o.n1, "L_sp1"); spf(3, o.n3, "L_sp3"); spf(2, o.n2, "L_sp2")
        e("L_nsp:")
    e("s_or_b32 s48, s2, s51\ns_cmp_lg_u32 s48, 0\ns_cbranch_scc1 L_noepoch")
    e(f"v_mov_b32 v8, {EPOCH_OFF}\nv_mov_b32 v9, s73\ns_mov_b64 exec, 1\nglobal_store_dword v8, v9, s[8:9] sc1\ns_mov_b64 exec, -1")
    e("L_noepoch:")
    e("s_waitcnt vmcnt(0)")
    if o.gprio:
        e(f"s_setprio {o.gprio}")
    e("s_mov_b32 s67, 1\ns_cmp_eq_u32 s15, 0\ns_cbranch_scc1 L_lastknown")
    e("s_add_u32 s48, s60, 16\ns_cmp_ge_u32 s48, s64\ns_cselect_b32 s67, 1, 0\ns_cmp_eq_u32 s61, 63\ns_cselect_b32 s67, s67, 0")
    e("L_lastknown:")
    blocks = []
    for s in range(4):
        for t in range(4):
            if s == 0 and t == 0: ob, kind = 0, 0
            elif s == t: ob, kind = 0, 1
            elif t == 0: ob, kind = s, 2
            elif s == 0: ob, kind = t, 3
            else:
                j, k = s - 1, t - 1
                i = 3 - j - k
                sign = 1 if (i, j, k) in ((0, 1, 2), (1, 2, 0), (2, 0, 1)) else -1
                ob, kind = 1 + i, 4 if sign > 0 else 5
            blocks.append((s, t, ob, kind))
    NF = 8
    stages = [(h, tau) for h in range(2) for tau in ((0, 2, 1) if o.tord else (0, 1, 2))]
    def finish(tau):
        e(f"s_cmp_eq_u32 s67, 0\ns_cbranch_scc1 L_nofin_{tau}")
        e("s_nop 5")
        a = VO + 16 * tau
        for r in range(4):
            e(f"v_mul_f32 v{8+r}, s45, v{a+r}")
        for r in range(4):
            e(f"v_exp_f32 v{8+r}, v{8+r}")
        e(f"v_cvt_pk_bf16_f32 v24, v{a}, v{a+1}\nv_cvt_pk_bf16_f32 v25, v{a+2}, v{a+3}")
        e(f"ds_write_b64 v5, v[24:25] offset:{OST[tau]}")
        for r in range(4):
            e(f"v_add_f32 v{8+r}, 1.0, v{8+r}")
        for r in range(4):
            e(f"v_rcp_f32 v{8+r}, v{8+r}")
        e("s_nop 0")
        for ob in range(1, 4):
            for r in range(4):
                e(f"v_mul_f32 v{a+4*ob+r}, v{a+4*ob+r}, v{8+r}")
            e(f"v_cvt_pk_bf16_f32 v{24+2*ob}, v{a+4*ob}, v{a+4*ob+1}\nv_cvt_pk_bf16_f32 v{25+2*ob}, v{a+4*ob+2}, v{a+4*ob+3}")
            e(f"ds_write_b64 v5, v[{24+2*ob}:{25+2*ob}] offset:{OST[tau] + 128*ob}")
        e(f"s_mov_b64 exec, 1\nds_add_rtn_u32 v8, v14, v12 offset:{C_STORE + 4*tau}\ns_mov_b64 exec, -1")
        e(f"s_waitcnt lgkmcnt(0)\nv_readfirstlane_b32 s48, v8\ns_cmp_lg_u32 s48, 3\ns_cbranch_scc1 L_nofin_{tau}")
        nk = 8 if tau < 2 else 4
        for k in range(nk):
            e(f"ds_read_b128 v[{VF+4*k}:{VF+3+4*k}], v6 offset:{OST[tau] + 1056*k}")
        for k in range(nk):
            if tau == 0 and k % 4 == 0:
                e(f"s_add_u32 s48, s44, {1024*k}")
            e(f"s_waitcnt lgkmcnt({nk-1-k})")
            if tau == 0:
                e(f"buffer_store_dwordx4 v[{VF+4*k}:{VF+3+4*k}], v7, s[40:43], s48 offen offset:{1024*(k%4)} {o.ostore}")
            else:
                e(f"buffer_store_dwordx4 v[{VF+4*k}:{VF+3+4*k}], v{VF+32+k}, s[40:43], s44 offen {o.ostore}")
        e(f"L_nofin_{tau}:")
    def last_stage(h, tau):
        a = VO + 16 * tau
        e("v_lshrrev_b32 v8, 5, v1\ns_lshl_b32 s48, s51, 4\nv_lshl_add_u32 v8, v8, 2, s48\nv_and_b32 v9, 0x1f0, v7")
        e(f"ds_read2_b32 v[{VF+32}:{VF+33}], v8 offset0:{(C_PERM + 64*tau)//4} offset1:{(C_PERM + 64*tau)//4 + 2}")
        e("s_mul_i32 s48, s51, 2112\nv_add_u32 v13, s48, v6\ns_waitcnt lgkmcnt(0)")
        e(f"v_add_u32 v{VF+32}, v9, v{VF+32}\nv_add_u32 v{VF+33}, v9, v{VF+33}")
        e("s_barrier")
        stamp(e, o, 9)
        steps = sorted([(ob, s, t, kind, ks) for (s, t, ob, kind) in blocks if hof(t) == h for ks in range(2)])
        ops = []
        def fread(n):
            ob, s, t, kind, ks = steps[n]
            off = (tau % 2) * 32768 + s * 512 + h * 256
            e(f"ds_read_b128 v[{VF+4*(n%NF)}:{VF+3+4*(n%NF)}], v{16 + 2*sub(t) + ks + (4 if tau == 2 else 0)} offset:{off}")
            ops.append(n)
        def outblk(ob):
            src = a
            if ob:
                src = 28
                for r in range(4):
                    e(f"v_mul_f32 v{28+r}, v{a+4*ob+r}, v{8+r}")
            p = 24 + 2 * (ob % 2)
            e(f"v_cvt_pk_bf16_f32 v{p}, v{src}, v{src+1}\nv_cvt_pk_bf16_f32 v{p+1}, v{src+2}, v{src+3}")
            e(f"ds_write_b64 v5, v[{p}:{p+1}] offset:{OST[tau] + 128*ob}")
            ops.append(-1)
        for n in range(NF - 1):
            fread(n)
        for n in range(16):
            ob, s, t, kind, ks = steps[n]
            if n + NF - 1 < 16:
                fread(n + NF - 1)
            e(f"s_waitcnt lgkmcnt({len(ops) - 1 - ops.index(n)})")
            w = VW + 8 * kind + 4 * ks
            e(f"v_mfma_f32_16x16x32_bf16 v[{a+4*ob}:{a+4*ob+3}], v[{w}:{w+3}], v[{VF+4*(n%NF)}:{VF+3+4*(n%NF)}], v[{a+4*ob}:{a+4*ob+3}]")
            if n == 6:
                for r in range(4):
                    e(f"v_mul_f32 v{8+r}, s45, v{a+r}")
            if n in (7, 8):
                for r in range(2 * (n - 7), 2 * (n - 7) + 2):
                    e(f"v_exp_f32 v{8+r}, v{8+r}")
            if n == 9:
                for r in range(4):
                    e(f"v_add_f32 v{8+r}, 1.0, v{8+r}")
            if n in (10, 11):
                for r in range(2 * (n - 10), 2 * (n - 10) + 2):
                    e(f"v_rcp_f32 v{8+r}, v{8+r}")
            if n == 12:
                outblk(0)
            if n == 13:
                outblk(1)
        outblk(2)
        e("s_cmp_eq_u32 s67, 0")
        outblk(3)
        e(f"s_cbranch_scc1 L_nofin_{tau}")
        e("s_waitcnt lgkmcnt(0)\ns_barrier")
        for k in range(2):
            e(f"ds_read_b128 v[{VF+4*k}:{VF+3+4*k}], v13 offset:{OST[tau] + 1056*k}")
        for k in range(2):
            e(f"s_waitcnt lgkmcnt({1-k})\nbuffer_store_dwordx4 v[{VF+4*k}:{VF+3+4*k}], v{VF+32+k}, s[40:43], s44 offen {o.ostore2}")
        e(f"L_nofin_{tau}:")
    for (h, tau) in stages:
        if o.tail and (h, tau) == stages[-1]:
            assert tau == 1
            last_stage(h, tau)
            continue
        if (o.exp & 8) and (h, tau) != stages[-1]:
            continue
        if h == 1 and tau > 0:
            nk = 8 if tau < 2 else 4
            e("v_lshrrev_b32 v8, 5, v1\nv_lshlrev_b32 v8, 2, v8\nv_and_b32 v9, 0x1f0, v7")
            for k in range(nk):
                e(f"ds_read_b32 v{VF+32+k}, v8 offset:{C_PERM + 64*tau + 8*k}")
            e("s_waitcnt lgkmcnt(0)")
            for k in range(nk):
                e(f"v_add_u32 v{VF+32+k}, v9, v{VF+32+k}")
        e("s_mov_b32 s72, 0")
        e(f"L_poll_{h}_{tau}:")
        e(f"ds_read_b32 v8, v14 offset:{C_STAGE + 4*(3*h+tau)}\ns_waitcnt lgkmcnt(0)\nv_readfirstlane_b32 s48, v8")
        e(f"s_cmp_ge_u32 s48, {16 if tau < 2 else 8}\ns_cbranch_scc1 L_go_{h}_{tau}")
        e(f"s_sleep {1 if (h, tau) == stages[-1] else o.psleep}\ns_add_u32 s72, s72, 1\ns_cmp_lt_u32 s72, 0x40000\ns_cbranch_scc1 L_poll_{h}_{tau}\ns_endpgm")
        e(f"L_go_{h}_{tau}:")
        if (h, tau) == stages[-1]:
            stamp(e, o, 9)
        steps = [(s, t, ob, kind, ks) for (s, t, ob, kind) in blocks if hof(t) == h for ks in range(2)]
        def fread(n):
            s, t, ob, kind, ks = steps[n]
            off = (tau % 2) * 32768 + s * 512 + h * 256
            e(f"ds_read_b128 v[{VF+4*(n%NF)}:{VF+3+4*(n%NF)}], v{16 + 2*sub(t) + ks + (4 if tau == 2 else 0)} offset:{off}")
        for n in range(NF - 1):
            fread(n)
        for n in range(len(steps)):
            s, t, ob, kind, ks = steps[n]
            if n + NF - 1 < len(steps):
                fread(n + NF - 1)
            e(f"s_waitcnt lgkmcnt({min(NF - 1, len(steps) - 1 - n)})")
            acc = VO + 16 * tau + 4 * ob
            w = VW + 8 * kind + 4 * ks
            e(f"v_mfma_f32_16x16x32_bf16 v[{acc}:{acc+3}], v[{w}:{w+3}], v[{VF+4*(n%NF)}:{VF+3+4*(n%NF)}], v[{acc}:{acc+3}]")
        if o.xlate and h == 0 and (h, tau) == stages[o.xlate - 2]:
            xlate()
        if o.n3b and (h, tau) == stages[2]:
            e("s_cmp_lg_u32 s15, 0\ns_cbranch_scc1 L_nsq")
            spf(3, o.n3b, "L_sq3", o.n3)
            e("L_nsq:")
        if h == 1:
            finish(tau)
    adv_slow("L_gnext", "L_final")
    e("L_final:")
    if o.tstamp:
        e(f"s_mov_b64 exec, -1\nv_lshlrev_b32 v8, 4, v1\nv_add_u32 v9, {LDS}, v8\nds_read_b128 v[24:27], v9")
        e(f"s_lshl_b32 s48, s2, 10\ns_add_u32 s48, s48, {STAMP_OFF + (2 << 20)}\nv_add_u32 v8, s48, v8\ns_waitcnt lgkmcnt(0)\nglobal_store_dwordx4 v8, v[24:27], s[8:9]")
    if o.stamp:
        e("s_waitcnt vmcnt(0)")
        stamp(e, o, 11)
        stamp_out(e, o)
    e("L_end:\ns_endpgm")

DOC = r'''
; ---------------------------------------------------------------------------------------------------------
;              records {coef01, coef23, key} plus one table row {start, count, tag | checksum + tag} to d_ws.
; ---------------------------------------------------------------------------------------------------------
'''

def generate(o):
    e = Asm()
    K = NAME + "_kernel"
    lds = LDS + (1024 if o.tstamp else 0)
    head = HEADER + (f"; @launch kernel={K} grid=(256,1,1) block=(768,1,1) lds={lds}\n" if o.aslist else f"; @launch grid=(256,1,1) block=(768,1,1) lds={lds}\n")
    e(f'.amdgcn_target "amdgcn-amd-amdhsa--gfx950"')
    e.l.extend(DOC.strip("\n").split("\n"))
    e(f'.text\n.globl {K}')
    gen(e, o)
    return head + e.text(['head', 'aux', 'loop', 'stages', 'cold']) + KD.format(name=K, vgpr=168, sgpr=102, accum=168)

if __name__ == "__main__":
    kw = {}
    out = f"cdna_kernels/{NAME}.s"
    for a in sys.argv[1:]:
        k, v = a.split("=")
        if k == "out":
            out = v
        else:
            kw[k] = {"True": True, "False": False}.get(v, int(v) if v.lstrip("-").isdigit() else v)
    open(out, "w").write(generate(Opt(**kw)))
    print("wrote", out)
```

```python
import sys
from gen3 import KD, NAME, HEADER, stamp_init, stamp_out, half, STAMP_OFF
from gen3 import stamp as _stamp
def stamp(e, o, i):
    if o.stamp == 2 and i == 8:
        e("s_cmp_lg_u32 s14, 0\ns_cbranch_scc1 1f\nv_mov_b32 v12, 0\nv_mov_b32 v13, s78\nds_write_b32 v12, v13 offset:1016\n1:")
    if o.stamp == 2 and i == 11:
        e("ds_read_b32 v8, v14 offset:1016\ns_waitcnt lgkmcnt(0)\nv_readfirstlane_b32 s78, v8")
    if o.stamp != 2 or i == 11:
        _stamp(e, o, i)
_stamp_init = stamp_init
def stamp_init(e, o):
    if o.stamp != 2:
        _stamp_init(e, o)

REC_STRIDE = 30208
TAB_STRIDE = 2176
TAB_OFF = 8 << 20
EPOCH_OFF = 10 << 20
CHK_OFF = 9 << 20
CHK_ROW = 2048 + 128
FLAG_OFF = CHK_OFF + (1 << 19)
assert 256 * REC_STRIDE <= TAB_OFF

class Asm:
    def __init__(self):
        self.s = {}
        self.sec("head")
    def sec(self, name):
        self.l = self.s.setdefault(name, [])
    def __call__(self, s):
        for x in s.split("\n"):
            x = x.strip()
            if x:
                self.l.append(x if x.endswith(":") and not x.startswith(";") else "    " + x)
    def text(self, order):
        assert sorted(order) == sorted(self.s), (order, list(self.s))
        return "\n".join(l for n in order for l in self.s[n]) + "\n"

class Opt:
    stamp = False
    tstamp = False
    nt = False
    psleep = 4
    ostore = "sc1"
    aslist = False
    cpf = 1
    tsleep = 1
    tsleep0 = 0
    srcpos = 1
    pbar = 0
    bal = 1
    ackgate = 0
    forcefail = 0
    tord = 1
    tail = 1
    kord = '432'
    wscale = 1
    cpf2 = 0
    wlate = 0
    dpf = 8
    wpf = 0
    spf = 0
    scpf = 0
    w1new = 1
    exp = 0
    po = 'p3222111002'
    py = 'p3322211103'
    trim = 1
    wpos = 1
    wsl = 0
    fast = 0
    hsp = 0
    tail2 = 1
    eplate = 0
    ppos = 3
    wfirst = 0
    retry = 1
    xat = 7
    xold = 0
    gp = ''
    zmid = 96
    halves = 1
    hlate = 1
    pre = 1
    adpp = 0
    sx = 0
    sxpos = 1
    n1 = 0
    n2 = 10
    n3 = 5
    n3b = 0
    p0 = 0
    p1 = 0
    zlate = 0
    stag = 0
    stagbit = 7
    nodup = 1
    tshare = 2
    xlate = 7
    ostore2 = 'sc1'
    lfirst = 0
    xpf = 0
    xpre = 1
    xpos = 'C2'
    xl = 16
    pmask = 1
    nmap = 0
    prio = 7
    gprio = 3
    split = 5000
    first = 32
    def __init__(self, **kw):
        for k, v in kw.items():
            assert hasattr(self, k), k
            setattr(self, k, v)

CL = 68
NSL = 152
KSTR = 4 * NSL
MID = 4 * CL
L_CNT = 0
C_STAGE, C_STORE, C_MAX, C_TASK, C_FLAG = 320, 352, 368, 372, 512
L_KEY = 1024
KEYLIM = L_KEY + 40 * KSTR
L_COEF = 25600
COFF = L_COEF - 2 * L_KEY
L_T = 74496
assert 2 * KEYLIM + COFF + 8 <= L_T and L_T % 256 == 0
P_HIST = 75776
P_BASES = P_HIST + 3072
P_STAGE = P_BASES + 10240
P_W = P_STAGE + 30720
P_WR = P_W + 40960
LDS = P_WR + 1024
assert LDS >= L_T + 40 * 2048 and LDS <= 163840
OST = [L_COEF - L_KEY, L_COEF - L_KEY + 8448, 0]
C_PERM = C_FLAG
NLC = 12
NGC = NLC // 4
VB, VA, VACC = 72, 48, 24
VW, VO, VF = 32, 80, 128
VC0, VC1 = VB + 32, VB + 80

def gen(e, o):
    HO = 128 if o.hsp else 256
    hof = (lambda t: t % 2) if o.hsp else (lambda t: t // 2)
    sub = (lambda t: t // 2) if o.hsp else (lambda t: t % 2)
    TS = o.tshare
    TROW = 2048 * TS + 128
    def vrow(dst, p, tmp):
        if TS == 1:
            e(f"v_mul_u32_u24 v{dst}, {TAB_STRIDE}, v{p}")
        else:
            lg = TS.bit_length() - 1
            e(f"v_lshrrev_b32 v{tmp}, {5 + lg}, v{p}\nv_lshlrev_b32 v{tmp}, 5, v{tmp}\nv_and_or_b32 v{tmp}, v{p}, 31, v{tmp}\nv_mul_u32_u24 v{tmp}, {TROW}, v{tmp}")
            e(f"v_bfe_u32 v{dst}, v{p}, 5, {lg}\nv_lshl_add_u32 v{dst}, v{dst}, {7 - lg}, v{tmp}")
    def crow(dst, p, tmp):
        e(f"v_lshrrev_b32 v{tmp}, 6, v{p}\nv_lshlrev_b32 v{tmp}, 5, v{tmp}\nv_and_or_b32 v{tmp}, v{p}, 31, v{tmp}\nv_mul_u32_u24 v{tmp}, {CHK_ROW}, v{tmp}")
        e(f"v_bfe_u32 v{dst}, v{p}, 5, 1\nv_lshl_add_u32 v{dst}, v{dst}, 6, v{tmp}")
    nt = " nt" if o.nt else ""
    K = NAME + "_kernel"
    e(f".p2align 8\n.type {K},@function\n{K}:")
    if o.stamp == 2:
        e("s_memrealtime s[78:79]")
    if o.fast:
        n = 192 // o.dpf
        e("s_load_dwordx16 s[16:31], s[0:1], 8")
        e("s_cmpk_ge_u32 s2, 256\ns_cbranch_scc1 L_end")
        stamp_init(e, o)
        e("s_getpc_b64 s[46:47]\nL_pc:")
        e(f"s_bfe_u32 s48, s2, {hex(((o.dpf.bit_length() - 1) << 16) | 3)}\ns_mulk_i32 s48, {n * 128}\nv_lshl_add_u32 v70, v0, 7, s48\nv_min_u32 v70, L_cold-L_pc, v70")
        e(f"v_cmp_gt_u32 vcc, {n}, v0\ns_and_saveexec_b64 s[44:45], vcc\ns_cbranch_execz L_pfd")
        e("global_load_dword v71, v70, s[46:47]")
        e("L_pfd:\ns_mov_b64 exec, -1")
        e("v_min_u32 v5, 624, v0\ns_mul_i32 s48, s2, 625\nv_add_lshl_u32 v6, v5, s48, 4")
        HZ = f"v_lshlrev_b32 v26, 2, v0\nv_add_u32 v26, {P_HIST}, v26\nv_mov_b32 v64, 0\nds_write_b32 v26, v64"
        PT = "s_load_dwordx2 s[8:9], s[0:1], 88\ns_load_dwordx2 s[4:5], s[0:1], 0\ns_load_dwordx2 s[10:11], s[0:1], 72"
        if o.fast == 2:
            e(PT + "\n" + HZ)
        if o.fast == 3:
            e(HZ)
        e("s_waitcnt lgkmcnt(0)")
        e(f"global_load_dwordx4 v[8:11], v6, s[22:23]{nt}")
        if o.fast == 1:
            e(PT + "\n" + HZ)
        if o.fast == 3:
            e(PT)
        e("v_lshrrev_b32 v4, 6, v0\ns_nop 0")
        e("v_readfirstlane_b32 s14, v4\nv_and_b32 v1, 63, v0")
        e("v_lshrrev_b32 v7, 1, v6\nv_add_u32 v5, v6, v7")
        e("s_cmp_ge_u32 s14, 10")
        if o.fast == 1:
            e("s_waitcnt lgkmcnt(0)")
        e("s_barrier\ns_cbranch_scc1 L_helper")
    else:
        e("s_cmp_ge_u32 s2, 256\ns_cbranch_scc1 L_end")
        stamp_init(e, o)
        e("s_load_dwordx8 s[16:23], s[0:1], 8")
        e("s_load_dwordx2 s[8:9], s[0:1], 88")
        e("s_load_dwordx2 s[4:5], s[0:1], 0")
        e("s_load_dwordx4 s[24:27], s[0:1], 40")
        e("s_load_dwordx2 s[28:29], s[0:1], 56")
        e("s_load_dwordx2 s[10:11], s[0:1], 72")
        e("v_lshrrev_b32 v4, 6, v0\nv_and_b32 v1, 63, v0")
        e("v_min_u32 v5, 624, v0")
        e("v_readfirstlane_b32 s14, v4")
        e("s_mul_i32 s48, s2, 625\nv_add_u32 v5, s48, v5")
        e("v_lshlrev_b32 v6, 4, v5")
        e(f"v_lshlrev_b32 v26, 2, v0\nv_add_u32 v26, {P_HIST}, v26\nv_mov_b32 v64, 0")
        e("ds_write_b32 v26, v64")
        e("s_cmp_lt_u32 s14, 10\ns_cbranch_scc1 L_prod")
        if o.scpf:
            n = 160 // (2 * o.scpf)
            e("s_getpc_b64 s[46:47]\nL_pc:")
            e(f"s_lshr_b32 s48, s2, 2\ns_and_b32 s48, s48, {2 * o.scpf - 2}\ns_add_u32 s48, s48, s14\ns_sub_u32 s48, s48, 10\ns_mul_i32 s48, s48, {n * 128}")
            e("s_add_u32 s46, s46, s48\ns_addc_u32 s47, s47, 0\ns_waitcnt lgkmcnt(0)")
            for i in range(n):
                e(f"s_load_dword s87, s[46:47], {128*i}")
            e("s_barrier\ns_branch L_helper")
        elif o.dpf:
            n = 192 // o.dpf
            e("s_getpc_b64 s[46:47]\nL_pc:")
            e(f"s_lshr_b32 s48, s2, 3\ns_and_b32 s48, s48, {o.dpf - 1}\ns_mul_i32 s49, s48, {n * 128}\nv_lshl_add_u32 v70, v1, 7, s49")
            e(f"s_mov_b64 exec, {hex((1 << n) - 1)}" if n <= 32 else f"s_mov_b32 exec_hi, {hex((1 << (n - 32)) - 1)}")
            e("s_cmp_eq_u32 s14, 11\ns_cbranch_scc1 L_wpf")
            e("v_min_u32 v70, L_cold-L_pc, v70\nglobal_load_dword v71, v70, s[46:47]\ns_branch L_pfd")
            e("L_wpf:")
            if o.spf & 8:
                e("; speed only: first touch of this workgroup's src, e_attr, rhat")
                e("s_mul_i32 s37, s2, 10000\ns_mul_i32 s38, s2, 5000\ns_mul_i32 s39, s2, 15000\ns_waitcnt lgkmcnt(0)")
                e("s_load_dword s87, s[20:21], s37\ns_load_dword s87, s[18:19], s38\ns_load_dword s87, s[16:17], s39\ns_mov_b64 exec, -1\ns_barrier\ns_branch L_helper")
            if o.wpf:
                e("v_min_u32 v69, 16380, v70\ns_waitcnt lgkmcnt(0)\nglobal_load_dword v71, v70, s[28:29]\nglobal_load_dword v71, v69, s[26:27]")
            e("L_pfd:\ns_mov_b64 exec, -1")
        elif o.cpf:
            e("s_getpc_b64 s[46:47]\nL_pc:")
            e("v_subrev_u32 v70, 640, v0\nv_lshlrev_b32 v70, 7, v70\nv_min_u32 v69, " + ("L_late" if o.cpf2 else "L_cold") + "-L_pc, v70")
            e("global_load_dword v71, v69, s[46:47]")
        e("s_waitcnt lgkmcnt(0)\ns_barrier")
        e("s_branch L_helper\nL_prod:")
        e("s_waitcnt lgkmcnt(0)")
        e(f"global_load_dwordx4 v[8:11], v6, s[22:23]{nt}")
        if not o.eplate:
            e(f"s_add_u32 s30, s8, {EPOCH_OFF}\ns_addc_u32 s31, s9, 0\ns_load_dword s73, s[30:31], 0")
        e("v_lshlrev_b32 v7, 3, v5\nv_mul_u32_u24 v5, 24, v5")
        if o.srcpos != 1:
            e(f"global_load_dwordx4 v[12:15], v6, s[20:21]{nt}")
        if o.srcpos != 2:
            e("s_barrier")
    def payload(a):
        if o.srcpos == 1:
            e(f"global_load_dwordx4 v[12:15], v6, s[20:21]{nt}")
        e(f"global_load_dwordx2 v[16:17], {a}, s[18:19]{nt}")
        e(f"global_load_dwordx4 v[20:23], v5, s[16:17]{nt}")
        e(f"global_load_dwordx2 v[24:25], v5, s[16:17] offset:16{nt}")
    if o.stag:
        e(f"v_mov_b32 v18, v7\ns_bitcmp1_b32 s2, {o.stagbit}\ns_cbranch_scc1 L_st1")
    payload("v7")
    if o.stag:
        e("L_st1:")
    if o.srcpos == 2:
        e("s_barrier")
    if o.fast and not o.eplate:
        e(f"s_waitcnt lgkmcnt(0)\ns_add_u32 s30, s8, {EPOCH_OFF}\ns_addc_u32 s31, s9, 0\ns_load_dword s73, s[30:31], 0")
    def common_consts():
        e("v_and_b32 v2, 15, v0\nv_lshrrev_b32 v3, 4, v1")
        e("s_and_b32 s3, s2, 7\ns_lshl_b32 s3, s3, 5\ns_lshr_b32 s12, s2, 3\ns_add_u32 s3, s3, s12")
        e("s_mov_b32 s6, 5120000\ns_mov_b32 s7, 0x20000")
        e("s_mul_i32 s12, s3, 625\ns_add_u32 s13, s12, 640\ns_add_u32 s12, s12, 15\ns_lshr_b32 s12, s12, 4\ns_lshr_b32 s13, s13, 4\ns_sub_u32 s13, s13, s12")
        e("s_mov_b32 s15, 0\ns_mov_b32 s60, 0\ns_mov_b32 s61, 0")
        e(f"s_lshr_b32 s75, s3, 2\ns_lshl_b32 s75, s75, 4\ns_and_b32 s58, s3, 1\ns_lshl_b32 s58, s58, 3\ns_add_u32 s75, s75, s58")
        e(f"s_and_b32 s58, s3, 2\ns_lshl_b32 s58, s58, 9\ns_add_u32 s75, s75, s58")
        if o.tshare > 1:
            PC = 128 // o.tshare
            e(f"s_and_b32 s58, s75, {PC - 1}\ns_sub_u32 s75, s75, s58\ns_mul_i32 s75, s75, {o.tshare}\ns_add_u32 s75, s75, s58")
        e(f"s_add_u32 s75, s75, {TAB_OFF}")
    def zero_lists_all():
        e("v_mov_b32 v65, 0\nv_mov_b32 v66, 0\nv_mov_b32 v67, 0\nv_lshlrev_b32 v68, 4, v0")
        for k in range(6):
            e(f"ds_write_b128 v68, v[64:67] offset:{1024 + 12288*k}")
    zero_lists_all()
    common_consts()
    e("v_mov_b32 v7, 1\nv_lshlrev_b32 v27, 4, v1")
    e(f"s_lshl_b32 s48, s14, 10\ns_add_u32 s48, s48, {P_BASES - P_HIST}")
    e("v_mov_b32 v69, 625\nv_cmp_lt_u32 s[62:63], v0, v69")
    e(f"v_mov_b32 v69, {P_HIST}\ns_mov_b32 s50, 0x3fc")
    if o.stag:
        e(f"s_bitcmp0_b32 s2, {o.stagbit}\ns_cbranch_scc1 L_st2\ns_waitcnt vmcnt(0)")
        if o.stag == 1:
            payload("v18")
        e("L_st2:")
    e("s_waitcnt vmcnt(4)")
    if not (o.exp & 16):
        stamp(e, o, 1)
    for i in range(4):
        e(f"v_mul_u32_u24 v{28+i}, 214749, v{8+i}")
    e("s_mov_b64 exec, s[62:63]")
    for i in range(4):
        e(f"v_lshrrev_b32 v{28+i}, 21, v{28+i}\nv_and_or_b32 v{28+i}, v{28+i}, s50, v69")
        e(f"ds_add_rtn_u32 v{32+i}, v{28+i}, v7")
    e("s_mov_b64 exec, -1")
    e("v_add_u32 v26, v27, v69")
    e("s_waitcnt lgkmcnt(0)\ns_barrier")
    if o.stag == 2:
        e(f"s_bitcmp0_b32 s2, {o.stagbit}\ns_cbranch_scc1 L_st3")
        payload("v18")
        e("L_st3:")
    e("ds_read_b128 v[56:59], v26")
    def tag():
        e("s_add_u32 s73, s73, 0x9e3779b1\ns_lshl_b32 s74, s73, 24")
    if not o.eplate:
        tag()
    e(f"s_mul_i32 s49, s2, {REC_STRIDE}\ns_lshl_b32 s51, s73, 31")
    stamp(e, o, 2)
    e("s_waitcnt lgkmcnt(0)")
    def scan():
        e("v_add_u32 v37, v56, v57\nv_add_u32 v38, v58, v59\nv_add_u32 v36, v37, v38")
        e("v_mov_b32 v39, v36\ns_nop 1")
        for sh in (1, 2, 4, 8):
            e(f"v_add_u32_dpp v39, v39, v39 row_shr:{sh} row_mask:0xf bank_mask:0xf\ns_nop 1")
        e("v_add_u32_dpp v39, v39, v39 row_bcast:15 row_mask:0xa bank_mask:0xf\ns_nop 1")
        e("v_add_u32_dpp v39, v39, v39 row_bcast:31 row_mask:0xc bank_mask:0xf")
        e("v_sub_u32 v60, v39, v36")
        e("v_add_u32 v61, v60, v56\nv_add_u32 v62, v60, v37\nv_add_u32 v63, v62, v58")
    scan()
    e("v_add_u32 v36, s48, v26")
    e("ds_write_b128 v36, v[60:63]")
    e("s_mov_b64 exec, s[62:63]")
    for i in range(4):
        e(f"v_add_u32 v{36+i}, s48, v{28+i}")
    for i in range(4):
        e(f"ds_read_b32 v{36+i}, v{36+i}")
    e(f"v_mov_b32 v69, {P_STAGE}")
    e("s_waitcnt lgkmcnt(0)")
    for i in range(4):
        e(f"v_add_u32 v{32+i}, v{32+i}, v{36+i}\nv_mad_u32_u24 v{32+i}, v{32+i}, 12, v69")
    if o.ppos == 2:
        e("v_and_b32 v53, 7, v2\nv_lshl_add_u32 v53, v53, 2, v3\nv_lshl_add_u32 v53, v53, 3, s14")
        vrow(54, 53, 55)
        e("v_add_u32 v54, s75, v54")
    e("s_waitcnt vmcnt(3)")
    for i in range(4):
        e(f"v_cmp_le_u32 vcc, {o.split}, v{12+i}\nv_lshl_or_b32 v{48+i}, v{8+i}, 17, v{12+i}\nv_or_b32 v{48+i}, s51, v{48+i}\nv_or_b32 v52, 0x10000, v{48+i}\nv_cndmask_b32 v{48+i}, v{48+i}, v52, vcc")
        e(f"ds_write_b32 v{32+i}, v{48+i} offset:8")
    e("s_waitcnt vmcnt(0)")
    stamp(e, o, 3)
    for i in range(4):
        half(e, 36, 16 + i // 2, i % 2)
        for j in range(3):
            n = 3 * i + j
            half(e, 37 + j, 20 + n // 2, n % 2)
        for j in range(3):
            e(f"v_mul_f32 v{37+j}, v36, v{37+j}")
        e(f"v_cvt_pk_bf16_f32 v{40+2*i}, v36, v37\nv_cvt_pk_bf16_f32 v{41+2*i}, v38, v39")
        e(f"ds_write2_b32 v{32+i}, v{40+2*i}, v{41+2*i} offset0:0 offset1:1")
        e(f"v_alignbit_b32 v{12+i}, v{41+2*i}, v{48+i}, 31\nv_bitop3_b32 v52, v{48+i}, v{41+2*i}, 1 bitop3:0xbe\nv_xad_u32 v{12+i}, v{12+i}, v{40+2*i}, v{48+i}\nv_mul_lo_u32 v{12+i}, v{12+i}, v52\nds_add_u32 v{28+i}, v{12+i} offset:1024")
    e("s_mov_b64 exec, -1")
    e(f"v_add_u32 v5, {P_STAGE}, v68\nv_add_u32 v4, s49, v68\nv_add_u32 v6, 10240, v4\nv_add_u32 v7, 20480, v4")
    e("s_cmp_lt_u32 s14, 2\ns_cbranch_scc1 L_pub")
    e.sec("aux")
    e("L_pub:\ns_cmp_eq_u32 s14, 0\ns_cbranch_scc1 L_pub0")
    e("v_mov_b32 v56, v58\nv_mov_b32 v57, v59\nv_mov_b32 v60, v62\nv_mov_b32 v61, v63\nv_add_u32 v26, 8, v26")
    e("L_pub0:")
    for i in range(2):
        e(f"v_lshl_or_b32 v{16+2*i}, v{56+i}, 12, v{60+i}\nv_or_b32 v{16+2*i}, s74, v{16+2*i}")
    e("v_mov_b32 v20, s2")
    vrow(22, 20, 21)
    e(f"v_and_b32 v21, {128 // TS - 1}, v68\nv_sub_u32 v20, v68, v21\nv_mad_u32_u24 v20, v20, {TS}, v21")
    e(f"v_add_u32 v22, v22, v20\nv_add_u32 v22, {TAB_OFF}, v22")
    RD = "ds_read_b128 v[32:35], v5\nds_read_b128 v[8:11], v5 offset:10240\nds_read_b128 v[12:15], v5 offset:20480"
    e("s_waitcnt lgkmcnt(0)\ns_barrier")
    e("ds_read_b64 v[20:21], v26 offset:1024\n" + RD + "\ns_waitcnt lgkmcnt(3)\nv_add_u32 v17, s73, v20\nv_add_u32 v19, s73, v21")
    e("global_store_dwordx4 v22, v[16:19], s[8:9] sc1\ns_branch L_pubd")
    e.sec("head")
    e("s_waitcnt lgkmcnt(0)\ns_barrier")
    stamp(e, o, 4)
    e(RD + "\nL_pubd:")
    if o.ppos == 2:
        e("s_cmp_ge_u32 s14, 8\ns_cbranch_scc1 L_np")
        e("s_mov_b32 exec_lo, 0x00ff00ff\ns_mov_b32 exec_hi, 0x00ff00ff\nglobal_load_dwordx2 v[66:67], v54, s[8:9] sc1\ns_mov_b64 exec, -1\nL_np:")
    e("s_waitcnt lgkmcnt(2)\nglobal_store_dwordx4 v4, v[32:35], s[8:9] sc1")
    e("s_waitcnt lgkmcnt(1)\nglobal_store_dwordx4 v6, v[8:11], s[8:9] sc1")
    if o.trim:
        e("v_cmp_gt_u32 vcc, 600, v0\ns_and_b64 exec, exec, vcc")
    e("s_waitcnt lgkmcnt(0)\nglobal_store_dwordx4 v7, v[12:15], s[8:9] sc1")
    if o.trim:
        e("s_mov_b64 exec, -1")
    e("s_cmp_ge_u32 s14, 8\ns_cbranch_scc1 L_p89")
    e("v_and_b32 v28, 7, v2\nv_lshl_add_u32 v28, v28, 2, v3\nv_lshl_add_u32 v28, v28, 3, s14")
    vrow(30, 28, 29)
    e("v_add_u32 v30, s75, v30")
    if o.ppos == 4:
        e("v_mov_b32 v7, s73\ns_mov_b32 exec_lo, 0x00ff00ff\ns_mov_b32 exec_hi, 0x00ff00ff\nglobal_load_dwordx2 v[6:7], v30, s[8:9] sc1\ns_mov_b64 exec, -1")
    e(f"v_lshlrev_b32 v69, 7, v28\nv_add_u32 v69, {FLAG_OFF}, v69")
    if o.w1new:
        e(f"v_mul_u32_u24 v64, {REC_STRIDE}, v28\nv_lshrrev_b32 v65, 3, v2\nv_add_u32 v65, 16, v65\nv_mad_u32_u24 v64, v65, 12, v64")
    e(f"v_lshl_add_u32 v28, v3, 3, s14\nv_mul_u32_u24 v28, {REC_STRIDE}, v28\nv_mul_u32_u24 v29, 12, v2\nv_add_u32 v31, v28, v29")
    e(f"s_mov_b32 s68, s8\ns_mov_b32 s69, s9\ns_mov_b32 s70, {TAB_OFF}\ns_mov_b32 s71, 0x20000")
    for i in range(o.zmid, 96 - o.zlate):
        e(f"v_mov_b32 v{VB+i}, 0")
    e("v_add_u32 v26, 16, v2")
    if o.xpos[0] == "C" and o.xl:
        e("; speed only: addresses of x lines to touch ahead of the gather")
        NCW = 0 if (o.sx or o.p1 or o.n1) else 5 if o.xlate else 15
        e(f"s_lshl_b32 s48, s2, 3\ns_add_u32 s48, s48, s14\ns_mul_i32 s48, s48, {NCW}\nv_add_u32 v27, s48, v1")
        e(f"v_cmp_gt_u32 vcc, 10000, v27\nv_mov_b32 v28, {(HO - 2560000) & 0xffffffff}\nv_mov_b32 v29, 2560000\nv_cndmask_b32 v28, v28, v29, vcc")
        e("s_and_b32 s48, s2, 7\ns_mul_i32 s48, s48, 5\ns_sub_u32 s48, s48, 16\nv_add_u32 v29, s48, v1\nv_subrev_u32 v36, 40, v29\nv_min_u32 v29, v29, v36")
        e("s_and_b32 s48, s2, 0xf8\ns_add_u32 s48, s48, s14\ns_mul_i32 s48, s48, 40\nv_add_u32 v29, s48, v29")
        e("v_cmp_gt_u32 vcc, 16, v1\ns_nop 1\nv_cndmask_b32 v27, v29, v27, vcc\nv_cndmask_b32 v28, 0, v28, vcc")
        e(f"v_lshrrev_b32 v29, 1, v27\nv_lshl_add_u32 v28, v29, 9, v28\nv_and_b32 v27, 1, v27\nv_lshl_add_u32 v27, v27, {8 if o.hsp else 7}, v28")
        e(f"s_mov_b32 s48, {((((1 << o.xl) - 1) << 16) | ((1 << NCW) - 1)) & 0xffffffff}\ns_mov_b32 s49, {(((1 << o.xl) - 1) << 16) >> 32}\nv_mov_b32 v29, 0x40000000\nv_cndmask_b32 v27, v29, v27, s[48:49]")
    elif o.xpos[0] == "C":
        e("s_lshl_b32 s48, s2, 3\ns_add_u32 s48, s48, s14\ns_mul_i32 s48, s48, 2560\nv_lshl_add_u32 v27, v1, 7, s48")
        e("v_cmp_gt_u32 vcc, 20, v1\nv_mov_b32 v29, 0x40000000\ns_nop 0\nv_cndmask_b32 v27, v29, v27, vcc")
    e("v_and_b32 v20, 3, v2\nv_mul_u32_u24 v20, 0x5555, v20")
    e("v_lshl_add_u32 v21, v3, 5, v2")
    e("v_mov_b32 v22, 1\nv_mov_b32 v23, 4")
    e("v_lshlrev_b32 v16, 4, v2")
    if o.hsp:
        e("v_and_b32 v17, 8, v2\nv_lshl_add_u32 v16, v17, 4, v16")
    e("v_mov_b32 v17, 512")
    e("v_lshlrev_b32 v18, 2, v3\nv_lshl_add_u32 v18, v2, 4, v18")
    e("v_lshrrev_b32 v19, 1, v3\nv_lshlrev_b32 v19, 5, v19\nv_and_b32 v24, 1, v3\nv_lshl_add_u32 v19, v24, 4, v19")
    e(f"v_lshrrev_b32 v24, 2, v2\nv_lshl_add_u32 v19, v24, 1, v19\nv_add_u32 v19, {COFF}, v19")
    if o.adpp:
        e("v_and_b32 v24, 1, v2\nv_lshl_add_u32 v19, v24, 6, v19\nv_and_b32 v24, 2, v2\nv_lshl_add_u32 v19, v24, 2, v19")
    e(f"s_lshl_b32 s50, s12, 3\ns_sub_u32 s50, {L_CNT}, s50\ns_lshr_b32 s48, s51, 14\ns_sub_u32 s50, s50, s48")
    e(f"v_mov_b32 v24, 0x40000000\nv_mov_b32 v25, {KEYLIM}\ns_mov_b32 s59, {L_KEY}")
    if o.eplate:
        e("s_waitcnt lgkmcnt(0)")
        tag()
    HALF = "s_mov_b32 exec_lo, 0x00ff00ff\ns_mov_b32 exec_hi, 0x00ff00ff"
    POLL = "global_load_dwordx2 v[6:7], v30, s[8:9] sc1"
    e("s_mov_b32 s72, 0\ns_mov_b32 s66, 0\ns_mov_b32 s57, 0\ns_mov_b64 s[52:53], 0" + ("\nv_mov_b32 v7, s73" if o.ppos != 4 else ""))
    if o.ppos not in (0, 4):
        e("s_waitcnt vmcnt(0)")
        stamp(e, o, 5)
    if o.ppos == 3:
        e("s_barrier")
    e(HALF + ("\n" + POLL if o.ppos != 4 else ""))
    if o.zmid:
        e("s_mov_b64 exec, -1")
        for i in range(o.zmid):
            e(f"v_mov_b32 v{VB+i}, 0")
        e(HALF)
    if o.ppos in (0, 4):
        e("s_waitcnt vmcnt(0)")
        stamp(e, o, 5)
    if o.ppos in (0, 1, 4):
        e("s_barrier")
    e("L_tpoll:")
    e("s_waitcnt vmcnt(0)")
    e("v_and_b32 v4, 0xff000000, v6\nv_cmp_ne_u32 vcc, s74, v4\ns_cmp_eq_u64 vcc, 0\ns_cbranch_scc1 L_tready")
    e(f"s_sleep {o.tsleep}\ns_mov_b64 exec, vcc\n" + POLL)
    e("s_add_u32 s72, s72, 1\ns_cmp_lt_u32 s72, 0x80000\ns_cbranch_scc1 L_tpoll\ns_endpgm")
    e("L_tready:")
    e("s_mov_b64 exec, -1")
    e("v_mov_b32_dpp v6, v6 row_shr:8 row_mask:0xf bank_mask:0xc")
    e("v_and_b32 v5, 0xfff, v6\nv_bfe_u32 v4, v6, 12, 12\nv_mul_u32_u24 v5, 12, v5")
    def rank(r):
        e(f"v_bfe_u32 v15, v{r+2}, 16, 1\nv_mad_u32_u16 v{r+3}, v{r+2}, v23, s50 op_sel:[1,0,0,0]\nv_lshl_add_u32 v15, v15, 3, -4")
        e(f"ds_add_rtn_u32 v{r+3}, v{r+3}, v15")
    def place(r):
        e(f"v_med3_u32 v{r+3}, v{r+3}, s59, v25\nv_lshlrev_b32 v8, 1, v{r+3}")
        e(f"ds_write_b32 v{r+3}, v{r+2}")
        e(f"ds_write_b64 v8, v[{r}:{r+1}] offset:{COFF}")
    XP = "buffer_load_dword v167, v27, s[4:7], 0 offen"
    for i in range(96 - o.zlate, 96):
        e(f"v_mov_b32 v{VB+i}, 0")
    e("v_sub_u32 v14, v4, v65\nv_add_u32 v68, v5, v64\nv_mov_b32 v29, v31\ns_mov_b32 s51, 0")
    e("v_cmp_lt_u32 vcc, 32, v4\ns_cmp_lg_u64 vcc, 0\ns_cbranch_scc1 L_long")
    e("L_load:")
    stamp(e, o, 6)
    for r in range(8):
        e(f"v_cmp_lt_i32 s[{32+2*r}:{33+2*r}], {2*r}, v14\ns_and_b64 exec, exec, s[{32+2*r}:{33+2*r}]\ns_cbranch_scc0 L_x1")
        e(f"global_load_dwordx3 v[{VB+4*r}:{VB+2+4*r}], v68, s[8:9] offset:{24*r} sc1\ns_mov_b32 s51, {r+1}")
    e("L_x1:\ns_mov_b64 exec, -1")
    for i in range(8):
        e(f"v_mov_b32_dpp v9, v4 row_newbcast:{i} row_mask:0xf bank_mask:0xf")
        e(f"v_cmp_lt_u32 s[{16+2*i}:{17+2*i}], v2, v9")
        e(f"v_add_u32_dpp v{10+i%2}, v5, v29 row_newbcast:{i} row_mask:0xf bank_mask:0xf")
        e(f"v_add_u32 v29, {32*REC_STRIDE}, v29")
        e(f"v_cndmask_b32 v{10+i%2}, v24, v{10+i%2}, s[{16+2*i}:{17+2*i}]")
        e(f"buffer_load_dwordx3 v[{32+4*i}:{34+4*i}], v{10+i%2}, s[68:71], 0 offen sc1")
    def some(f, lo, hi):
        for i in range(lo, hi):
            e(f"s_mov_b64 exec, s[{16+2*i}:{17+2*i}]")
            f(32 + 4 * i)
    def extra(f, lbl):
        for r in range(8):
            e(f"s_cmp_le_u32 s51, {r}\ns_cbranch_scc1 {lbl}\ns_mov_b64 exec, s[{32+2*r}:{33+2*r}]")
            f(VB + 4 * r)
        e(f"{lbl}:")
    def hsh(r, acc=7):
        e(f"v_alignbit_b32 v6, v{r+1}, v{r+2}, 31\nv_bitop3_b32 v9, v{r+2}, v{r+1}, 1 bitop3:0xbe\nv_xad_u32 v6, v6, v{r}, v{r+2}\nv_mul_lo_u32 v6, v6, v9\nv_sub_u32 v{acc}, v{acc}, v6")
    AD = [12, 13, 22, 26, 28, 66, 67, 70]
    def prerank(i):
        r = 32 + 4 * i
        e(f"v_bfe_u32 v{AD[i]}, v{r+2}, 16, 1\nv_mad_u32_u16 v{r+3}, v{r+2}, v23, s50 op_sel:[1,0,0,0]\nv_lshl_add_u32 v{AD[i]}, v{AD[i]}, 3, -4")
    e("s_waitcnt vmcnt(8)")
    e("v_subrev_u32 v7, s73, v7")
    extra(hsh, "L_x4")
    e("s_mov_b64 exec, -1")
    def verify(acc, lbl, ff):
        for sh in (1, 2, 4, 8):
            e(f"v_add_u32_dpp v{acc}, v{acc}, v{acc} row_shr:{sh} row_mask:0xf bank_mask:0xf\ns_nop 1")
        e(f"v_add_u32_dpp v{acc}, v{acc}, v{acc} row_bcast:15 row_mask:0xa bank_mask:0xf\ns_nop 1")
        e(f"v_add_u32_dpp v{acc}, v{acc}, v{acc} row_bcast:31 row_mask:0xc bank_mask:0xf\ns_nop 0")
        e(f"v_readlane_b32 s48, v{acc}, 63")
        if o.forcefail & ff:
            e("s_or_b32 s48, s48, 1")
        e(f"s_andn2_b32 s48, s48, s66\ns_cbranch_scc1 {lbl}")
    radd = lambda r: e(f"ds_add_rtn_u32 v{r+3}, v{r+3}, v{AD[(r - 32) // 4]}")
    if o.halves:
        e("v_mov_b32 v71, 0\ns_mov_b32 exec_lo, 0x0f0f0f0f\ns_mov_b32 exec_hi, 0x0f0f0f0f\nv_swap_b32 v71, v7\ns_mov_b64 exec, -1")
        for q in range(4):
            e(f"s_andn2_b64 s[{16+2*q}:{17+2*q}], s[{16+2*q}:{17+2*q}], s[52:53]")
        for i in range(8):
            e(f"s_waitcnt vmcnt({7 - i + (1 if i > o.xat else 0)})")
            if i == 7:
                stamp(e, o, 7)
            if i == o.xat and o.xpos == "C2":
                if o.xold:
                    assert o.xat == 7
                    e("s_cmp_ge_u32 s14, 4\ns_cbranch_scc1 L_nxp\n" + XP)
                    e("v_add_u32 v10, 40960, v27\ns_mov_b64 exec, 0xffff\nv_add_u32 v10, 5120, v27\ns_mov_b64 exec, -1\n" + XP.replace("v27", "v10") + "\nL_nxp:")
                else:
                    e(XP)
            hsh(32 + 4 * i, 71 if i < 4 else 7)
            prerank(i)
            if i == 3:
                verify(71, "L_retry", 1)
                some(radd, 0, 4)
                e("s_mov_b64 exec, -1")
            if i == 4:
                e("s_waitcnt lgkmcnt(0)")
                some(place, 0, 4)
                e("s_mov_b64 exec, -1\ns_mov_b64 s[52:53], -1")
        verify(7, "L_retry", 2)
        some(radd, 4, 8)
        extra(rank, "L_x2")
        e("s_waitcnt lgkmcnt(0)")
        some(place, 4, 8)
        extra(place, "L_x3")
    else:
        for i in range(8):
            e(f"s_waitcnt vmcnt({7-i})")
            if i == 7:
                stamp(e, o, 7)
                if o.xpos == "C2":
                    e(XP)
            hsh(32 + 4 * i)
            if o.pre and i < 7:
                prerank(i)
        if o.pre:
            prerank(7)
        else:
            e("s_nop 1")
        for sh in (1, 2, 4, 8):
            e(f"v_add_u32_dpp v7, v7, v7 row_shr:{sh} row_mask:0xf bank_mask:0xf\ns_nop 1")
        e("v_add_u32_dpp v7, v7, v7 row_bcast:15 row_mask:0xa bank_mask:0xf\ns_nop 1")
        e("v_add_u32_dpp v7, v7, v7 row_bcast:31 row_mask:0xc bank_mask:0xf\ns_nop 0")
        e("v_readlane_b32 s48, v7, 63")
        if o.forcefail:
            e("s_or_b32 s48, s48, 1")
        e("s_andn2_b32 s48, s48, s66\ns_cbranch_scc1 L_retry")
        if o.pre:
            some(lambda r: e(f"ds_add_rtn_u32 v{r+3}, v{r+3}, v{AD[(r - 32) // 4]}"), 0, 8)
        else:
            some(rank, 0, 8)
        extra(rank, "L_x2")
        e("s_waitcnt lgkmcnt(0)")
        some(place, 0, 8)
        extra(place, "L_x3")
    e.sec("cold")
    e("L_cold:")
    e("L_retry:\ns_waitcnt vmcnt(0)")
    if o.stamp:
        e("s_add_u32 s72, s72, 100")
    e(f"s_add_u32 s57, s57, 1\ns_cmp_le_u32 s57, {o.retry}\ns_cbranch_scc1 L_again\ns_branch L_flagwait")
    e("L_long:\ns_cmp_eq_u32 s66, 0\ns_cbranch_scc1 L_flagwait")
    e(f"v_mov_b32 v9, 0\ns_mov_b64 exec, vcc\nds_max_u32 v9, v4 offset:{C_MAX}\ns_mov_b64 exec, -1\ns_branch L_load")
    e("L_flagwait:")
    if o.stamp:
        e("s_add_u32 s72, s72, 100")
    e("s_mov_b32 s58, 0\ns_mov_b32 exec_lo, 0x00ff00ff\ns_mov_b32 exec_hi, 0x00ff00ff")
    e("L_fw:\nglobal_load_dwordx2 v[12:13], v69, s[8:9] sc1\ns_waitcnt vmcnt(0)")
    e("v_not_b32 v13, v13\nv_cmp_ne_u32 vcc, s73, v12\nv_cmp_ne_u32 s[48:49], s73, v13\ns_or_b64 vcc, vcc, s[48:49]\ns_cbranch_scc0 L_fok")
    e("s_sleep 2\ns_mov_b64 exec, vcc\ns_add_u32 s58, s58, 1\ns_cmp_lt_u32 s58, 0x80000\ns_cbranch_scc1 L_fw\ns_endpgm")
    e("L_fok:\ns_mov_b32 s66, -1\nL_again:\ns_mov_b64 exec, -1\nv_mov_b32 v7, s73")
    for i in range(32):
        e(f"v_mov_b32 v{VB+i}, 0")
    e(HALF + "\n" + POLL + "\ns_branch L_tpoll")
    e.sec("head")
    if o.xpos == "C3":
        e("s_mov_b64 exec, -1\n" + XP)
    e("L_placed:")
    e("s_mov_b64 exec, -1")
    e(f"v_lshlrev_b32 v8, 3, v1\nv_mul_u32_u24 v9, {KSTR}, v1\nv_add_u32 v9, {L_KEY + MID}, v9")
    e("s_waitcnt lgkmcnt(0)\ns_barrier")
    stamp(e, o, 8)
    if o.stamp == 1:
        e("s_memtime s[76:77]\ns_waitcnt lgkmcnt(0)\ns_mov_b32 s98, s76")
    def check_read():
        e(f"ds_read_b64 v[10:11], v8 offset:{L_CNT}\ns_waitcnt lgkmcnt(0)")
        e(f"v_readlane_b32 s65, v10, {C_MAX // 8}\nv_add_u32 v10, 4, v10\nv_sub_u32 v15, v11, v10")
    def check_test(lbl, lbl_restart):
        e(f"s_cmp_lg_u32 s15, 0\ns_cbranch_scc1 {lbl}_ok")
        e(f"v_sub_u32 v11, v11, v9\nv_sub_u32 v9, v9, v10\nv_max_u32 v9, v9, v11")
        e(f"v_cmp_lt_u32 vcc, {4*CL}, v9\nv_mov_b32 v9, 512\nv_cmp_lt_u32 s[48:49], v9, v15\ns_or_b64 vcc, vcc, s[48:49]")
        e("s_and_b32 vcc_hi, vcc_hi, 0xff\ns_or_b32 s48, vcc_lo, vcc_hi\ns_or_b32 s48, s48, s65")
        e(f"s_cmp_eq_u32 s48, 0\ns_cbranch_scc1 {lbl}_ok")
        e("s_mov_b32 s15, 1\ns_max_u32 s64, s65, 32\ns_min_u32 s64, s64, 2560")
        e(f"s_waitcnt vmcnt(0) lgkmcnt(0)\ns_barrier\ns_branch {lbl_restart}")
        e(f"{lbl}_ok:")
    def check_overflow(lbl, lbl_restart):
        check_read()
        check_test(lbl, lbl_restart)
    SC, SL, STB, SX, SS = 52, 79, 16, 21, 26
    NSTEP = 8 if o.nmap == 0 else 4
    KEYR = lambda k, i: 2 + 2 * k + i // 16
    AR = [12, 24, 28]
    ACC = lambda k: 32 + 8 * k
    BUF = [VB, VB + 48]
    def scale(r):
        e(f"v_mul_u32_u24_sdwa v{r}, v{r}, v17 dst_sel:DWORD dst_unused:UNUSED_PAD src0_sel:WORD_0 src1_sel:DWORD")
    def load(k, i, dst, hs, tmp=(17, 18)):
        e(f"v_add_u32_dpp v{tmp[i%2]}, v{KEYR(k, i)}, v16 row_newbcast:{i%16} row_mask:0xf bank_mask:0xf")
        e(f"buffer_load_dwordx4 v[{dst}:{dst+3}], v{tmp[i%2]}, s[4:7], {hs} offen")
    def expand(a):
        if o.adpp:
            for r in range(4):
                e(f"v_mov_b32_dpp v{a+r}, v{a+3} quad_perm:[{r},{r},{r},{r}] row_mask:0xf bank_mask:0xf")
    def aread(G, a):
        if o.adpp:
            e(f"ds_read_u16 v{a+3}, v22 offset:{128*G}")
            return
        for r in range(4):
            e(f"ds_read_u16 v{a+r}, v22 offset:{128*G + 64*(r%2) + 8*(r//2)}")
    def swaps(q):
        if o.exp & 2:
            return
        e(f"v_swap_b32 v{q+2}, v{q+8}\nv_swap_b32 v{q+3}, v{q+9}\nv_swap_b32 v{q+6}, v{q+12}\nv_swap_b32 v{q+7}, v{q+13}")
    def mm(k, a, q):
        if o.exp & 1:
            return
        e(f"v_smfmac_f32_16x16x64_bf16 v[{ACC(k)}:{ACC(k)+3}], v[{a}:{a+3}], v[{q}:{q+7}], v20")
        e(f"v_smfmac_f32_16x16x64_bf16 v[{ACC(k)+4}:{ACC(k)+7}], v[{a}:{a+3}], v[{q+8}:{q+15}], v20")
    def flush_l(k):
        a = ACC(k)
        l = [f"v_xor_b32 v23, s{SX+k}, v21", f"v_lshl_add_u32 v23, v23, 4, s{STB+k}"]
        l += [f"v_cvt_pk_bf16_f32 v{a+d}, v{a+2*d}, v{a+2*d+1}" for d in range(4)]
        l += [f"ds_write_b128 v23, v[{a}:{a+3}]", f"v_mov_b32 v{a+4}, s{SS+k}", f"s_mov_b64 exec, 1\nds_inc_u32 v{a+4}, v19\ns_mov_b64 exec, -1"]
        l += [f"v_mov_b32 v{a+(i+5)%8}, 0" for i in range(8)]
        return l
    def flush(k):
        e("\n".join(flush_l(k)))
    def aread_l(G, a):
        if o.exp & 4:
            return []
        return [f"ds_read_u16 v{a+r}, v22 offset:{128*G + 64*(r%2) + 8*(r//2)}" for r in range(4)]
    def others(t, sfx):
        sp, k = divmod(t, 5)
        if o.adpp:
            l = [f"v_add_u32 v22, s{SL+k}, v19"] + [f"ds_read_u16 v{a+3}, v22 offset:{128*G}" for G, a in zip((2 * sp, 2 * sp + 1, 4 if sp else 5), AR)]
            return l + (["s_nop 5"] + flush_l(k - 1) if t >= 6 else [])
        l = [f"v_add_u32 v22, s{SL+k}, v19"] + aread_l(2 * sp, AR[0]) + aread_l(2 * sp + 1, AR[1])
        l.append(f"s_cmp_le_u32 s{SC+k}, {256 if sp else 320}\ns_cbranch_scc1 L_na{t}{sfx}\n" + "\n".join(aread_l(4 if sp else 5, AR[2])) + f"\nL_na{t}{sfx}:"
                 if sp or sfx else f"s_cmp_gt_u32 s{SC+k}, 320\ns_cbranch_scc1 L_xa{t}\nL_na{t}:")
        if t >= 6:
            l += flush_l(k - 1)
        return l
    check_read()
    GRP = [0, 1, 4, 2, 3] if o.tord else [0, 1, 2, 3, 4]
    e("s_mov_b32 s57, s14\ns_add_u32 s58, s14, 8")
    for k in range(2):
        e(f"v_readlane_b32 s{SL+k}, v10, s{57+k}\nv_readlane_b32 s{SC+k}, v15, s{57+k}\ns_nop 0")
        e(f"v_add_u32 v{12+k}, s{SL+k}, v18")
        e(f"ds_read2st64_b32 v[{2+2*k}:{3+2*k}], v{12+k} offset0:0 offset1:1")
    check_test("L_g", "L_slow_load")
    e("s_waitcnt lgkmcnt(1)")
    scale(2); scale(3)
    e(f"s_mov_b32 s84, 0\ns_mov_b32 s85, {HO}")
    if o.prio:
        e("s_setprio 3")
    for i in range(8):
        load(0, i, BUF[0] + 4 * i, "0", tmp=(13, 14))
    e(f"s_cmp_le_u32 s{SC}, 320\ns_cbranch_scc1 L_nx0")
    for i in range(4):
        load(0, 20 + i, BUF[0] + 32 + 4 * i, "0", tmp=(13, 14))
    e("L_nx0:")
    if o.bal:
        e("; nodes 16..39 go to the waves by size so that the totals match (fixed order when working in rounds)")
        e("s_cmp_eq_u32 s15, 0\ns_cselect_b32 s48, -1, 0\nv_and_b32 v27, s48, v15\nv_lshl_or_b32 v24, v27, 6, v1\nv_mov_b32 v25, 0")
        e("v_add_u32_dpp v26, v27, v27 row_shl:8 row_mask:0xf bank_mask:0xf")
        for j in range(24):
            e(f"v_readlane_b32 s{16+j}, v24, {16+j}")
        e("v_lshl_or_b32 v26, v26, 3, v1")
        for j in range(0, 24, 3):
            for d in range(3):
                e(f"v_cmp_gt_u32 s[{40+2*d}:{41+2*d}], s{16+j+d}, v24")
            for d in range(3):
                e(f"v_addc_co_u32 v25, vcc, 0, v25, s[{40+2*d}:{41+2*d}]")
        e("v_readlane_b32 s48, v26, s14\ns_nop 1\nv_cmp_gt_u32 vcc, s48, v26\ns_and_b32 s48, vcc_lo, 0xff\ns_bcnt1_i32_b32 s48, s48")
        for k in map(int, str(o.kord)):
            e(f"v_cmp_eq_u32 vcc, s48, v25\ns_and_b32 vcc_lo, vcc_lo, 0xffff0000\ns_and_b32 vcc_hi, vcc_hi, 0xff\ns_ff1_i32_b64 s{38+k}, vcc\ns_add_u32 s48, s48, 8")
    else:
        for k in range(2, 5):
            e(f"s_add_u32 s{38+k}, s14, {8*k}")
    e(f"s_lshl_b32 s48, s14, 2\nv_mov_b32 v24, s48")
    for k in range(2, 5):
        e(f"v_readlane_b32 s{SL+k}, v10, s{38+k}\nv_readlane_b32 s{SC+k}, v15, s{38+k}\ns_lshl_b32 s48, s{38+k}, 9")
        e(f"v_add_u32 v{10+k}, s{SL+k}, v18\nv_mov_b32 v{23+k}, s48")
    for k in range(2, 5):
        e(f"ds_read2st64_b32 v[{2+2*k}:{3+2*k}], v{10+k} offset0:0 offset1:1")
    e("s_mov_b64 exec, 1")
    for k in range(2, 5):
        e(f"ds_write_b32 v24, v{23+k} offset:{C_PERM + 32*GRP[k]}")
    e("s_mov_b64 exec, -1")
    for i in range(40):
        e(f"v_mov_b32 v{32+i}, 0")
    for k in range(5):
        e(f"s_lshl_b32 s{SL+k}, s{SL+k}, 1\ns_lshl_b32 s{STB+k}, s14, 11\ns_add_u32 s{STB+k}, s{STB+k}, {L_T + 16384*GRP[k]}\ns_add_u32 s{SX+k}, s14, {8*(GRP[k] & 1)}")
        e(f"s_mov_b32 s{SS+k}, {C_STAGE + 4*(GRP[k] >> 1)}")
    e(f"s_mov_b32 s86, s{SC}")
    e("s_waitcnt lgkmcnt(0)")
    for r in range(4, 12):
        scale(r)
    e("s_branch L_hloop")
    e.sec("loop")
    e("L_late:\nL_hloop:")
    for t in range(10):
        sp, k = divmod(t, 5)
        nsp, nk = divmod((t + 1) % 10, 5)
        cb, nb = BUF[t % 2], BUF[(t + 1) % 2]
        oth = others(t, "")
        if not o.lfirst:
            e("\n".join(oth)); oth = []
        def some(i, n):
            e("\n".join(oth[len(oth) * i // n:len(oth) * (i + 1) // n]))
        if o.po:
            a_, b_ = o.po[1 + t], o.py[1 + t]
            if a_ == b_:
                e(f"s_setprio {a_}")
            else:
                e(f"s_setprio {b_}\ns_cmp_ge_u32 s14, 4\ns_cbranch_scc1 L_pr{t}\ns_setprio {a_}\nL_pr{t}:")
        elif o.prio >= 2:
            pat = {2: [3, 2, 1, 0, 3, 2, 1, 0, 1, 0], 3: [3, 3, 2, 1, 0, 3, 3, 2, 1, 0], 4: [3, 3, 3, 2, 2, 2, 1, 1, 0, 0], 5: [2, 1, 0, 3, 2, 1, 0, 2, 1, 0], 6: [3, 3, 3, 3, 2, 2, 1, 1, 0, 3], 7: [3, 3, 2, 2, 2, 1, 1, 0, 0, 3], 8: [3, 3, 3, 3, 3, 3, 2, 1, 0, 3], 9: [2, 1, 0, 0, 3, 3, 2, 1, 0, 3], 10: [3, 2, 2, 1, 1, 1, 0, 0, 0, 3], 11: [3, 3, 3, 2, 2, 2, 2, 1, 0, 3], 12: [1, 0, 1, 0, 1, 3, 2, 1, 0, 2]}[o.prio]
            e(f"s_setprio {pat[t]}")
        if o.prio == 1 and t in (4, 9):
            e(f"s_cmp_eq_u32 s84, 0\ns_cbranch_scc1 L_pa{t}\ns_setprio 0\ns_branch L_pb{t}\nL_pa{t}:\ns_setprio {2 if t == 4 else 1}\nL_pb{t}:")
        cs = "s86" if t == 9 else f"s{SC+nk}"
        hs = "s85" if t == 9 else "s84"
        if nsp == 0:
            e(f"s_cmp_eq_u32 {cs}, 0\ns_cbranch_scc1 L_w{t}_0")
            for i in range(8):
                load(nk, i, nb + 4 * i, hs)
                if i < 6:
                    some(i, 6)
                if o.adpp and i == 5:
                    e("s_waitcnt lgkmcnt(0)"); expand(AR[0])
                if o.adpp and i == 6:
                    expand(AR[1])
            e(f"s_cmp_gt_u32 {cs}, 320\ns_cbranch_scc1 L_xl{t}")
            e("s_waitcnt vmcnt(8) lgkmcnt(0)")
        else:
            e(f"s_cmp_le_u32 {cs}, 128\ns_cbranch_scc1 L_w{t}_0")
            for i in range(5):
                load(nk, 8 + i, nb + 4 * i, hs)
                some(i, 5)
                if o.adpp and i == 3:
                    e("s_waitcnt lgkmcnt(0)"); expand(AR[0])
                if o.adpp and i == 4:
                    expand(AR[1])
            for i in range(5, 12):
                e(f"s_cmp_le_u32 {cs}, {16*(8+i)}\ns_cbranch_scc1 L_w{t}_{i}")
                load(nk, 8 + i, nb + 4 * i, hs)
            e(f"s_branch L_w{t}_12")
            for i in range(5, 12):
                e(f"L_w{t}_{i}:\ns_waitcnt vmcnt({i})")
            e(f"L_w{t}_12:\ns_waitcnt vmcnt(12) lgkmcnt(0)")
        e(f"L_go{t}:")
        swaps(cb); swaps(cb + 16)
        mm(k, AR[0], cb); mm(k, AR[1], cb + 16)
        if sp == 1:
            e(f"s_cmp_le_u32 s{SC+k}, 256\ns_cbranch_scc1 L_md{t}")
            expand(AR[2])
            swaps(cb + 32)
            e(f"s_cmp_gt_u32 s{SC+k}, 384\ns_nop 0")
            mm(k, AR[2], cb + 32)
            e(f"s_cbranch_scc1 L_more{t}")
            e(f"L_md{t}:")
        else:
            e(f"s_cmp_gt_u32 s{SC+k}, 320\ns_cbranch_scc1 L_xm{t}\nL_md{t}:")
        if o.tstamp:
            e(f"s_memrealtime s[76:77]\ns_mul_i32 s48, s14, 80\ns_lshr_b32 s49, s84, {7 if o.hsp else 8}\ns_mul_i32 s49, s49, 40\ns_add_u32 s48, s48, s49\ns_add_u32 s48, s48, {LDS + 4*t}\nv_mov_b32 v17, s48\ns_waitcnt lgkmcnt(0)\nv_mov_b32 v18, s76\nds_write_b32 v17, v18")
    if o.tail and o.tail2:
        fl = flush_l(4)
        e("s_cmp_lg_u32 s84, 0\ns_nop 7\n" + "\n".join(fl[:7]) + "\ns_cbranch_scc1 L_tdone\n" + "\n".join(fl[7:]))
    else:
        e("s_nop 8")
        flush(4)
        e("s_cmp_lg_u32 s84, 0\ns_cbranch_scc1 L_tdone")
    for k in range(5):
        e(f"s_add_u32 s{STB+k}, s{STB+k}, 256\ns_add_u32 s{SS+k}, s{SS+k}, 12")
    e(f"s_mov_b32 s84, {HO}\ns_mov_b32 s86, 0\ns_branch L_hloop")
    e("L_tdone:")
    if o.tail:
        e("s_waitcnt lgkmcnt(0)\ns_barrier")
    stamp(e, o, 9)
    if o.stamp == 1:
        e("s_memtime s[76:77]\ns_waitcnt lgkmcnt(0)\ns_sub_u32 s99, s76, s98\ns_add_u32 s98, s72, 1")
    def adv_slow(lbl_round, lbl_done):
        e(f"s_cmp_eq_u32 s15, 0\ns_cbranch_scc1 {lbl_done}")
        e("s_add_u32 s61, s61, 1\ns_cmp_lt_u32 s61, 64\ns_cselect_b32 s48, 0, 16\ns_cselect_b32 s61, s61, 0\ns_add_u32 s60, s60, s48")
        e(f"s_cmp_ge_u32 s60, s64\ns_cbranch_scc1 {lbl_done}")
        e(f"s_waitcnt lgkmcnt(0)\ns_barrier\ns_branch {lbl_round}")
    adv_slow("L_slow_load", "L_gdone")
    e("L_gdone:")
    if o.stamp != 2:
        stamp_out(e, o)
    e("s_endpgm")
    for t in range(10):
        e(f"L_w{t}_0:")
        if o.lfirst:
            e("\n".join(others(t, "s")))
        if o.adpp:
            e("s_waitcnt lgkmcnt(0)"); expand(AR[0]); expand(AR[1])
        e(f"s_waitcnt vmcnt(0) lgkmcnt(0)\ns_branch L_go{t}")
    for t in range(10):
        sp, k = divmod(t, 5)
        nsp, nk = divmod((t + 1) % 10, 5)
        if sp == 0:
            if not o.adpp:
                e(f"L_xa{t}:")
                aread(5, AR[2])
                e(f"s_branch L_na{t}")
            e(f"L_xm{t}:")
            expand(AR[2])
            swaps(BUF[t % 2] + 32)
            e("s_nop 1")
            mm(k, AR[2], BUF[t % 2] + 32)
            e(f"s_branch L_md{t}")
        if nsp == 0:
            e(f"L_xl{t}:")
            for i in range(4):
                load(nk, 20 + i, BUF[(t + 1) % 2] + 32 + 4 * i, "s85" if t == 9 else "s84")
            e(f"s_waitcnt vmcnt(12) lgkmcnt(0)\ns_branch L_go{t}")
    e.sec("cold")
    for t in range(5, 10):
        k = t - 5
        cb = BUF[t % 2]
        e(f"L_more{t}:")
        for i in range(24, 32):
            e(f"s_cmp_le_u32 s{SC+k}, {16*i}\ns_cbranch_scc1 L_mi{t}")
            load(k, i, cb + 4 * (i - 24), "s84")
        e(f"L_mi{t}:")
        for G in range(6, 8):
            e(f"s_cmp_le_u32 s{SC+k}, {64*G}\ns_cbranch_scc1 L_mx{t}")
            aread(G, AR[0])
            e("s_waitcnt vmcnt(0) lgkmcnt(0)")
            expand(AR[0])
            swaps(cb + 16 * (G - 6))
            e("s_nop 1")
            mm(k, AR[0], cb + 16 * (G - 6))
        e(f"L_mx{t}:\ns_branch L_md{t}")
    e("L_slow_load:")
    e("s_barrier")
    e("v_and_b32 v2, 15, v0\nv_lshrrev_b32 v3, 4, v1\nv_mov_b32 v23, 4\nv_mov_b32 v17, 512\nv_lshlrev_b32 v18, 2, v3\nv_lshl_add_u32 v18, v2, 4, v18")
    e("s_cmp_ge_u32 s14, 1\ns_cbranch_scc1 L_placed")
    e("s_lshl_b32 s48, s61, 2\nv_add_u32 v6, s48, v3")
    vrow(7, 6, 8)
    e("v_add_u32 v7, s75, v7")
    e("global_load_dword v8, v7, s[8:9] sc1")
    e(f"v_mul_u32_u24 v6, {REC_STRIDE}, v6\nv_add_u32 v10, s60, v2\nv_mov_b32 v25, {KEYLIM}")
    e("s_waitcnt vmcnt(0)")
    e("v_bfe_u32 v9, v8, 12, 12\nv_and_b32 v8, 0xfff, v8\nv_add_u32 v8, v8, v10\nv_mul_u32_u24 v8, 12, v8\nv_add_u32 v35, v8, v6")
    e("v_cmp_lt_u32 vcc, v10, v9\ns_and_b64 exec, exec, vcc")
    e("s_cbranch_execz L_placed")
    e("global_load_dwordx3 v[32:34], v35, s[8:9] sc1\ns_waitcnt vmcnt(0)")
    rank(32)
    e("s_waitcnt lgkmcnt(0)")
    place(32)
    e("s_branch L_placed")

    e.sec("aux")
    e("L_p89:")
    assert not o.eplate
    e(f"s_lshl_b32 s48, s2, 7\ns_add_u32 s48, s48, {FLAG_OFF}\nv_mov_b32 v30, s48\nv_mov_b32 v48, s73\nv_not_b32 v49, v48")
    e("s_waitcnt vmcnt(0)")
    stamp(e, o, 5)
    e("s_barrier")
    e("s_cmp_lg_u32 s14, 8\ns_cbranch_scc1 L_gemm")
    e("s_mov_b64 exec, 1\nglobal_store_dwordx2 v30, v[48:49], s[8:9] sc1\ns_mov_b64 exec, -1")
    e("s_branch L_gemm")

    def init_cnt(vz, r):
        e(f"v_mul_u32_u24 v{r+1}, {2*KSTR}, v1\nv_add_u32 v{r}, {L_KEY + MID - 4}, v{r+1}\nv_add_u32 v{r+2}, {L_KEY + MID - 4 + KSTR}, v{r+1}\nv_add_u32 v{r+3}, {L_KEY + MID + KSTR}, v{r+1}\nv_add_u32 v{r+1}, {L_KEY + MID}, v{r+1}")
        e(f"v_cmp_gt_u32 vcc, 20, v1\nv_lshlrev_b32 {vz}, 4, v1\ns_nop 0")
        for q in range(r, r + 4):
            e(f"v_cndmask_b32 v{q}, 0, v{q}, vcc")
        e(f"ds_write_b128 {vz}, v[{r}:{r+3}]")
    e("L_helper:")
    zero_lists_all()
    common_consts()
    e("v_lshlrev_b32 v5, 4, v1")
    e("s_cmp_eq_u32 s14, 11\ns_cbranch_scc1 L_h11")
    e("s_waitcnt lgkmcnt(0)")
    if o.spf & 1:
        e("; speed only: first touch of the weights")
        e("s_lshr_b32 s48, s2, 3\ns_mul_i32 s49, s48, 768\ns_lshl_b32 s48, s48, 9")
        e("s_add_u32 s32, s26, s48\ns_addc_u32 s33, s27, 0\ns_add_u32 s34, s28, s49\ns_addc_u32 s35, s29, 0")
        for i in range(4):
            e(f"s_load_dword s87, s[32:33], {128*i}")
        for i in range(6):
            e(f"s_load_dword s87, s[34:35], {128*i}")
        e("s_load_dword s87, s[24:25], 0")
    e("s_barrier")
    for _ in range(o.wpos - 1):
        e("s_barrier")
    if o.wsl:
        e(f"s_sleep {o.wsl}")
    for k in range(20):
        if k % 4 == 0:
            e(f"v_add_u32 v6, {1024*(k % 16)}, v5")
        e(f"global_load_dwordx4 v[{72+4*k}:{75+4*k}], v6, {'s[26:27]' if k < 16 else 's[28:29]'} offset:{1024*(k%4)}")
    e(f"v_add_u32 v7, {P_W}, v5")
    e("s_branch L_h2")
    e("L_h11:")
    init_cnt("v12", 32)
    e("s_waitcnt lgkmcnt(0)")
    if o.spf & 4:
        e("; speed only: one touch per 2 MiB of x")
        for off in (0, 2 << 20, 4 << 20):
            e(f"s_mov_b32 s37, {off}\ns_load_dword s87, s[4:5], s37")
    if o.spf & 2:
        for base, offs in (("s[8:9]", [30720 + REC_STRIDE * 68 * i for i in range(4)] + [TAB_OFF + 2048]), ("s[4:5]", [0, 2 << 20, 4 << 20]), ("s[10:11]", [0, 2 << 20, 4 << 20])):
            for off in offs:
                e(f"s_mov_b32 s37, {off}\ns_load_dword s87, {base}, s37")
    e("s_barrier")
    for _ in range(o.wpos - 1):
        e("s_barrier")
    if o.wsl:
        e(f"s_sleep {o.wsl}")
    for k in range(20):
        if k % 4 == 0:
            e(f"v_add_u32 v6, {4096 + 1024*k}, v5")
        e(f"global_load_dwordx4 v[{72+4*k}:{75+4*k}], v6, s[28:29] offset:{1024*(k%4)}")
    e(f"v_add_u32 v7, {P_W + 20480}, v5")
    e("L_h2:")
    e("v_min_u32 v6, 624, v5")
    e("global_load_dwordx4 v[152:155], v6, s[24:25]")
    CPF2 = "v_add_u32 v70, L_late-L_pc, v70\nv_min_u32 v70, L_cold-L_pc, v70\nglobal_load_dword v4, v70, s[46:47]"
    if o.cpf and o.cpf2 == 1:
        e(CPF2)
    def xph():
        e("s_lshl_b32 s48, s2, 1\ns_add_u32 s48, s48, s14\ns_sub_u32 s48, s48, 10\ns_mul_i32 s48, s48, 10240\nv_lshlrev_b32 v30, 7, v1")
        e("buffer_load_dword v31, v30, s[4:7], s48 offen\ns_add_u32 s48, s48, 8192\ns_mov_b64 exec, 0xffff\nbuffer_load_dword v31, v30, s[4:7], s48 offen\ns_mov_b64 exec, -1")
    if o.xpos == "A":
        xph()
    if o.wpos < 2:
        e("s_barrier")
    e("s_waitcnt vmcnt(0)")
    if o.wlate and o.wpos < 3:
        e("s_barrier")
    for k in range(20):
        e(f"ds_write_b128 v7, v[{72+4*k}:{75+4*k}] offset:{1024*k}")
    e(f"v_add_u32 v7, {P_WR}, v5\nds_write_b128 v7, v[152:155]")
    if not o.wlate:
        e("s_waitcnt lgkmcnt(0)\ns_barrier")
    if o.cpf and o.cpf2 == 2:
        e(CPF2)

    e("; waves 8-11: wave j owns output channels 16j..16j+15 of all four blocks")
    e("L_gemm:")
    e("s_sub_u32 s51, s14, 8")
    e("v_and_b32 v9, 7, v2")
    for c in range(4):
        e(f"v_add_u32 v8, {4*c}, v3\nv_xor_b32 v8, v8, v2\nv_lshlrev_b32 v8, 4, v8\nv_lshl_add_u32 v8, v2, 11, v8\nv_add_u32 v{16+c}, {L_T}, v8")
        e(f"v_add_u32 v8, {4*c}, v3\nv_xor_b32 v8, v8, v9\nv_lshlrev_b32 v8, 4, v8\nv_lshl_add_u32 v8, v9, 11, v8\nv_add_u32 v{20+c}, {L_T + 65536}, v8")
    e(f"v_mul_u32_u24 v5, 528, v2\nv_lshl_add_u32 v5, v3, 3, v5\ns_lshl_b32 s48, s51, 5\ns_add_u32 s48, s48, {L_KEY}\nv_add_u32 v5, s48, v5")
    e(f"v_lshrrev_b32 v6, 5, v1\nv_lshlrev_b32 v6, 4, v6\nv_lshl_add_u32 v6, v1, 4, v6\nv_add_u32 v6, {L_KEY}, v6")
    e("v_lshlrev_b32 v7, 4, v1")
    e("s_mov_b32 s40, s10\ns_mov_b32 s41, s11\ns_add_u32 s42, s12, s13\ns_lshl_b32 s42, s42, 9\ns_mov_b32 s43, 0x20000\ns_lshl_b32 s44, s12, 9")
    e("v_mov_b32 v14, 0\nv_mov_b32 v12, 1\ns_mov_b32 s45, 0xbfb8aa3b")
    e(f"s_lshl_b32 s48, s51, 5\ns_add_u32 s48, s48, {P_W}")
    e("v_lshrrev_b32 v28, 2, v2\nv_lshl_add_u32 v28, v3, 3, v28\nv_lshlrev_b32 v28, 7, v28\nv_and_b32 v29, 3, v2\nv_lshl_add_u32 v28, v29, 3, v28\nv_add_u32 v28, s48, v28")
    e(f"v_lshlrev_b32 v29, 4, v3\nv_add_u32 v29, {P_WR}, v29")
    if o.wlate:
        assert o.ackgate
        e(("s_waitcnt vmcnt(0) lgkmcnt(0)" if o.ackgate == 1 else "s_waitcnt lgkmcnt(0)") + "\ns_barrier")
    for f in range(10):
        e(f"ds_read_b64_tr_b16 v[{VW+4*f}:{VW+1+4*f}], v28 offset:{4096*f}")
        e(f"ds_read_b64_tr_b16 v[{VW+2+4*f}:{VW+3+4*f}], v28 offset:{4096*f+512}")
        e(f"ds_read_b128 v[{VF+4*f}:{VF+3+4*f}], v29 offset:{64*f}")
    if o.ackgate and not o.wlate:
        e("s_waitcnt vmcnt(0)\ns_barrier")
    if o.xpos == "B":
        e("s_cmp_lt_u32 s14, 10\ns_cbranch_scc1 L_nxb")
        xph()
        e("L_nxb:")
    if o.pbar:
        e("s_barrier")
    def spf(ph, n, lbl, skip=0):
        if not n:
            return
        e("s_lshr_b32 s48, s2, 3\ns_lshl_b32 s48, s48, 2\ns_add_u32 s48, s48, s51\ns_min_u32 s48, s48, 124\ns_mul_i32 s48, s48, 20480")
        e(f"s_add_u32 s48, s48, {(ph & 1) * 2560000 + (ph >> 1) * 256}\ns_add_u32 s46, s4, s48\ns_addc_u32 s47, s5, 0")
        e(f"s_and_b32 s48, s2, 7\ns_mul_i32 s48, s48, 2560\ns_add_u32 s48, s48, {512 * skip}\ns_mov_b32 s49, {n}")
        e(f"{lbl}:\ns_cmp_ge_u32 s48, 20480\ns_cselect_b32 s39, 20480, 0\ns_sub_u32 s48, s48, s39\ns_add_u32 s36, s46, s48\ns_addc_u32 s37, s47, 0\ns_waitcnt lgkmcnt(11)")
        for i in range(4):
            e(f"s_load_dword s87, s[36:37], {64*i}")
        e(f"s_add_u32 s48, s48, 512\ns_sub_u32 s49, s49, 1\ns_cmp_lg_u32 s49, 0\ns_cbranch_scc1 {lbl}")
    if o.p0 or o.p1:
        e("s_waitcnt lgkmcnt(0)")
        spf(0, o.p0, "L_sr0"); spf(1, o.p1, "L_sr1")
    def wscale():
        for i in range(48):
            e(f"v_mov_b32 v{VO+i}, 0")
        e("s_waitcnt lgkmcnt(0)")
        for f in range(10):
            for d in range(4):
                half(e, 24, VW + 4 * f + d, 0); half(e, 25, VW + 4 * f + d, 1)
                half(e, 26, VF + 4 * f + d, 0); half(e, 27, VF + 4 * f + d, 1)
                e("v_mul_f32 v24, v24, v26\nv_mul_f32 v25, v25, v27")
                e(f"v_cvt_pk_bf16_f32 v{VW+4*f+d}, v24, v25")
        for d in range(8):
            e(f"v_xor_b32 v{VW+40+d}, 0x80008000, v{VW+32+d}")
    if o.wscale == 0:
        wscale()
    else:
        e("s_mov_b32 s66, 1")
    e.sec("cold")
    e("L_gnext:")
    e("v_mov_b32 v8, 0\nv_mov_b32 v9, 0\nv_mov_b32 v10, 0\nv_mov_b32 v11, 0")
    e("s_lshl_b32 s48, s51, 10\nv_lshl_add_u32 v13, v1, 4, s48\nv_add_u32 v15, 0x8000, v13")
    for k in range(18):
        e(f"ds_write_b128 {'v13' if k < 8 else 'v15'}, v[8:11] offset:{1024 + 4096*k - (0 if k < 8 else 32768)}")
    e("s_cmp_lg_u32 s51, 0\ns_cbranch_scc1 L_gn2")
    init_cnt("v13", 8)
    e("L_gn2:")
    e("s_waitcnt lgkmcnt(0)\ns_barrier\ns_branch L_gplaced")
    e.sec("aux")
    e("L_gplaced:")
    e(f"v_lshlrev_b32 v8, 3, v1\nv_mul_u32_u24 v9, {KSTR}, v1\nv_add_u32 v9, {L_KEY + MID}, v9")
    e("s_waitcnt lgkmcnt(0)\ns_barrier")
    check_overflow("L_m", "L_gnext")
    e("s_branch L_stages")
    e.sec("stages")
    e("L_stages:")
    if o.wscale:
        e("s_cmp_eq_u32 s66, 0\ns_cbranch_scc1 L_wdone")
        wscale()
        e("s_mov_b32 s66, 0\nL_wdone:")
    def xlate():
        e("s_lshl_b32 s48, s2, 2\ns_add_u32 s48, s48, s51\ns_mul_i32 s48, s48, 5120\ns_add_u32 s48, s48, 256")
        e("v_lshrrev_b32 v8, 1, v1\nv_lshlrev_b32 v8, 9, v8\nv_and_b32 v9, 1, v1\nv_lshl_add_u32 v8, v9, 7, v8")
        e("s_mov_b64 exec, 0xfffff\nbuffer_load_dword v4, v8, s[4:7], s48 offen\ns_mov_b64 exec, -1")
    if o.xlate == 1:
        xlate()
    if o.xlate == 7:
        e("; speed only: second row halves through the scalar cache")
        e("s_cmp_lg_u32 s15, 0\ns_cbranch_scc1 L_nsp")
        spf(1, o.n1, "L_sp1"); spf(3, o.n3, "L_sp3"); spf(2, o.n2, "L_sp2")
        e("L_nsp:")
    e("s_or_b32 s48, s2, s51\ns_cmp_lg_u32 s48, 0\ns_cbranch_scc1 L_noepoch")
    e(f"v_mov_b32 v8, {EPOCH_OFF}\nv_mov_b32 v9, s73\ns_mov_b64 exec, 1\nglobal_store_dword v8, v9, s[8:9] sc1\ns_mov_b64 exec, -1")
    e("L_noepoch:")
    e("s_waitcnt vmcnt(0)")
    if o.gprio:
        e(f"s_setprio {o.gprio}")
    e("s_mov_b32 s67, 1\ns_cmp_eq_u32 s15, 0\ns_cbranch_scc1 L_lastknown")
    e("s_add_u32 s48, s60, 16\ns_cmp_ge_u32 s48, s64\ns_cselect_b32 s67, 1, 0\ns_cmp_eq_u32 s61, 63\ns_cselect_b32 s67, s67, 0")
    e("L_lastknown:")
    blocks = []
    for s in range(4):
        for t in range(4):
            if s == 0 and t == 0: ob, kind = 0, 0
            elif s == t: ob, kind = 0, 1
            elif t == 0: ob, kind = s, 2
            elif s == 0: ob, kind = t, 3
            else:
                j, k = s - 1, t - 1
                i = 3 - j - k
                sign = 1 if (i, j, k) in ((0, 1, 2), (1, 2, 0), (2, 0, 1)) else -1
                ob, kind = 1 + i, 4 if sign > 0 else 5
            blocks.append((s, t, ob, kind))
    NF = 8
    stages = [(h, tau) for h in range(2) for tau in ((0, 2, 1) if o.tord else (0, 1, 2))]
    def finish(tau):
        e(f"s_cmp_eq_u32 s67, 0\ns_cbranch_scc1 L_nofin_{tau}")
        e("s_nop 5")
        a = VO + 16 * tau
        for r in range(4):
            e(f"v_mul_f32 v{8+r}, s45, v{a+r}")
        for r in range(4):
            e(f"v_exp_f32 v{8+r}, v{8+r}")
        e(f"v_cvt_pk_bf16_f32 v24, v{a}, v{a+1}\nv_cvt_pk_bf16_f32 v25, v{a+2}, v{a+3}")
        e(f"ds_write_b64 v5, v[24:25] offset:{OST[tau]}")
        for r in range(4):
            e(f"v_add_f32 v{8+r}, 1.0, v{8+r}")
        for r in range(4):
            e(f"v_rcp_f32 v{8+r}, v{8+r}")
        e("s_nop 0")
        for ob in range(1, 4):
            for r in range(4):
                e(f"v_mul_f32 v{a+4*ob+r}, v{a+4*ob+r}, v{8+r}")
            e(f"v_cvt_pk_bf16_f32 v{24+2*ob}, v{a+4*ob}, v{a+4*ob+1}\nv_cvt_pk_bf16_f32 v{25+2*ob}, v{a+4*ob+2}, v{a+4*ob+3}")
            e(f"ds_write_b64 v5, v[{24+2*ob}:{25+2*ob}] offset:{OST[tau] + 128*ob}")
        e(f"s_mov_b64 exec, 1\nds_add_rtn_u32 v8, v14, v12 offset:{C_STORE + 4*tau}\ns_mov_b64 exec, -1")
        e(f"s_waitcnt lgkmcnt(0)\nv_readfirstlane_b32 s48, v8\ns_cmp_lg_u32 s48, 3\ns_cbranch_scc1 L_nofin_{tau}")
        nk = 8 if tau < 2 else 4
        for k in range(nk):
            e(f"ds_read_b128 v[{VF+4*k}:{VF+3+4*k}], v6 offset:{OST[tau] + 1056*k}")
        for k in range(nk):
            if tau == 0 and k % 4 == 0:
                e(f"s_add_u32 s48, s44, {1024*k}")
            e(f"s_waitcnt lgkmcnt({nk-1-k})")
            if tau == 0:
                e(f"buffer_store_dwordx4 v[{VF+4*k}:{VF+3+4*k}], v7, s[40:43], s48 offen offset:{1024*(k%4)} {o.ostore}")
            else:
                e(f"buffer_store_dwordx4 v[{VF+4*k}:{VF+3+4*k}], v{VF+32+k}, s[40:43], s44 offen {o.ostore}")
        e(f"L_nofin_{tau}:")
    def last_stage(h, tau):
        a = VO + 16 * tau
        e("v_lshrrev_b32 v8, 5, v1\ns_lshl_b32 s48, s51, 4\nv_lshl_add_u32 v8, v8, 2, s48\nv_and_b32 v9, 0x1f0, v7")
        e(f"ds_read2_b32 v[{VF+32}:{VF+33}], v8 offset0:{(C_PERM + 64*tau)//4} offset1:{(C_PERM + 64*tau)//4 + 2}")
        e("s_mul_i32 s48, s51, 2112\nv_add_u32 v13, s48, v6\ns_waitcnt lgkmcnt(0)")
        e(f"v_add_u32 v{VF+32}, v9, v{VF+32}\nv_add_u32 v{VF+33}, v9, v{VF+33}")
        e("s_barrier")
        stamp(e, o, 9)
        steps = sorted([(ob, s, t, kind, ks) for (s, t, ob, kind) in blocks if hof(t) == h for ks in range(2)])
        ops = []
        def fread(n):
            ob, s, t, kind, ks = steps[n]
            off = (tau % 2) * 32768 + s * 512 + h * 256
            e(f"ds_read_b128 v[{VF+4*(n%NF)}:{VF+3+4*(n%NF)}], v{16 + 2*sub(t) + ks + (4 if tau == 2 else 0)} offset:{off}")
            ops.append(n)
        def outblk(ob):
            src = a
            if ob:
                src = 28
                for r in range(4):
                    e(f"v_mul_f32 v{28+r}, v{a+4*ob+r}, v{8+r}")
            p = 24 + 2 * (ob % 2)
            e(f"v_cvt_pk_bf16_f32 v{p}, v{src}, v{src+1}\nv_cvt_pk_bf16_f32 v{p+1}, v{src+2}, v{src+3}")
            e(f"ds_write_b64 v5, v[{p}:{p+1}] offset:{OST[tau] + 128*ob}")
            ops.append(-1)
        for n in range(NF - 1):
            fread(n)
        for n in range(16):
            ob, s, t, kind, ks = steps[n]
            if n + NF - 1 < 16:
                fread(n + NF - 1)
            e(f"s_waitcnt lgkmcnt({len(ops) - 1 - ops.index(n)})")
            w = VW + 8 * kind + 4 * ks
            e(f"v_mfma_f32_16x16x32_bf16 v[{a+4*ob}:{a+4*ob+3}], v[{w}:{w+3}], v[{VF+4*(n%NF)}:{VF+3+4*(n%NF)}], v[{a+4*ob}:{a+4*ob+3}]")
            if n == 6:
                for r in range(4):
                    e(f"v_mul_f32 v{8+r}, s45, v{a+r}")
            if n in (7, 8):
                for r in range(2 * (n - 7), 2 * (n - 7) + 2):
                    e(f"v_exp_f32 v{8+r}, v{8+r}")
            if n == 9:
                for r in range(4):
                    e(f"v_add_f32 v{8+r}, 1.0, v{8+r}")
            if n in (10, 11):
                for r in range(2 * (n - 10), 2 * (n - 10) + 2):
                    e(f"v_rcp_f32 v{8+r}, v{8+r}")
            if n == 12:
                outblk(0)
            if n == 13:
                outblk(1)
        outblk(2)
        e("s_cmp_eq_u32 s67, 0")
        outblk(3)
        e(f"s_cbranch_scc1 L_nofin_{tau}")
        e("s_waitcnt lgkmcnt(0)\ns_barrier")
        for k in range(2):
            e(f"ds_read_b128 v[{VF+4*k}:{VF+3+4*k}], v13 offset:{OST[tau] + 1056*k}")
        for k in range(2):
            e(f"s_waitcnt lgkmcnt({1-k})\nbuffer_store_dwordx4 v[{VF+4*k}:{VF+3+4*k}], v{VF+32+k}, s[40:43], s44 offen {o.ostore2}")
        e(f"L_nofin_{tau}:")
    for (h, tau) in stages:
        if o.gp:
            e(f"s_setprio {o.gp[1 + stages.index((h, tau))]}")
        if o.tail and (h, tau) == stages[-1]:
            assert tau == 1
            last_stage(h, tau)
            continue
        if (o.exp & 8) and (h, tau) != stages[-1]:
            continue
        if h == 1 and tau > 0:
            nk = 8 if tau < 2 else 4
            e("v_lshrrev_b32 v8, 5, v1\nv_lshlrev_b32 v8, 2, v8\nv_and_b32 v9, 0x1f0, v7")
            for k in range(nk):
                e(f"ds_read_b32 v{VF+32+k}, v8 offset:{C_PERM + 64*tau + 8*k}")
            e("s_waitcnt lgkmcnt(0)")
            for k in range(nk):
                e(f"v_add_u32 v{VF+32+k}, v9, v{VF+32+k}")
        e("s_mov_b32 s72, 0")
        e(f"L_poll_{h}_{tau}:")
        e(f"ds_read_b32 v8, v14 offset:{C_STAGE + 4*(3*h+tau)}\ns_waitcnt lgkmcnt(0)\nv_readfirstlane_b32 s48, v8")
        e(f"s_cmp_ge_u32 s48, {16 if tau < 2 else 8}\ns_cbranch_scc1 L_go_{h}_{tau}")
        e(f"s_sleep {1 if (h, tau) == stages[-1] else o.psleep}\ns_add_u32 s72, s72, 1\ns_cmp_lt_u32 s72, 0x40000\ns_cbranch_scc1 L_poll_{h}_{tau}\ns_endpgm")
        e(f"L_go_{h}_{tau}:")
        if (h, tau) == stages[-1]:
            stamp(e, o, 9)
        steps = [(s, t, ob, kind, ks) for (s, t, ob, kind) in blocks if hof(t) == h for ks in range(2)]
        def fread(n):
            s, t, ob, kind, ks = steps[n]
            off = (tau % 2) * 32768 + s * 512 + h * 256
            e(f"ds_read_b128 v[{VF+4*(n%NF)}:{VF+3+4*(n%NF)}], v{16 + 2*sub(t) + ks + (4 if tau == 2 else 0)} offset:{off}")
        for n in range(NF - 1):
            fread(n)
        for n in range(len(steps)):
            s, t, ob, kind, ks = steps[n]
            if n + NF - 1 < len(steps):
                fread(n + NF - 1)
            e(f"s_waitcnt lgkmcnt({min(NF - 1, len(steps) - 1 - n)})")
            acc = VO + 16 * tau + 4 * ob
            w = VW + 8 * kind + 4 * ks
            e(f"v_mfma_f32_16x16x32_bf16 v[{acc}:{acc+3}], v[{w}:{w+3}], v[{VF+4*(n%NF)}:{VF+3+4*(n%NF)}], v[{acc}:{acc+3}]")
        if o.xlate and h == 0 and (h, tau) == stages[o.xlate - 2]:
            xlate()
        if o.n3b and (h, tau) == stages[2]:
            e("s_cmp_lg_u32 s15, 0\ns_cbranch_scc1 L_nsq")
            spf(3, o.n3b, "L_sq3", o.n3)
            e("L_nsq:")
        if h == 1:
            finish(tau)
    adv_slow("L_gnext", "L_final")
    e("L_final:")
    if o.tstamp:
        e(f"s_mov_b64 exec, -1\nv_lshlrev_b32 v8, 4, v1\nv_add_u32 v9, {LDS}, v8\nds_read_b128 v[24:27], v9")
        e(f"s_lshl_b32 s48, s2, 10\ns_add_u32 s48, s48, {STAMP_OFF + (2 << 20)}\nv_add_u32 v8, s48, v8\ns_waitcnt lgkmcnt(0)\nglobal_store_dwordx4 v8, v[24:27], s[8:9]")
    if o.stamp:
        e("s_waitcnt vmcnt(0)")
        stamp(e, o, 11)
        stamp_out(e, o)
    e("L_end:\ns_endpgm")

DOC = r'''
; ---------------------------------------------------------------------------------------------------------
;              records {coef01, coef23, key} plus one table row {start, count, tag | checksum + tag} to d_ws.
; ---------------------------------------------------------------------------------------------------------
'''

def generate(o):
    e = Asm()
    K = NAME + "_kernel"
    lds = LDS + (1024 if o.tstamp else 0)
    head = HEADER + (f"; @launch kernel={K} grid=(256,1,1) block=(768,1,1) lds={lds}\n" if o.aslist else f"; @launch grid=(256,1,1) block=(768,1,1) lds={lds}\n")
    e(f'.amdgcn_target "amdgcn-amd-amdhsa--gfx950"')
    e.l.extend(DOC.strip("\n").split("\n"))
    e(f'.text\n.globl {K}')
    gen(e, o)
    return head + e.text(['head', 'aux', 'loop', 'stages', 'cold']) + KD.format(name=K, vgpr=168, sgpr=102, accum=168)

if __name__ == "__main__":
    kw = {}
    out = f"cdna_kernels/{NAME}.s"
    for a in sys.argv[1:]:
        k, v = a.split("=")
        if k == "out":
            out = v
        else:
            kw[k] = {"True": True, "False": False}.get(v, int(v) if v.lstrip("-").isdigit() else v)
    open(out, "w").write(generate(Opt(**kw)))
    print("wrote", out)
```
